```python
import torch

def _softmax(x, axis=-1):
    return torch.softmax(x, dim=axis)
def _gelu(x):
    return torch.nn.functional.gelu(x, approximate="tanh")
def _silu(x):
    return torch.nn.functional.silu(x)
def _sigmoid(x):
    return torch.sigmoid(x)
def _layernorm(x, axis=-1, eps=1e-5):
    m = x.mean(dim=axis, keepdim=True)
    v = x.var(dim=axis, keepdim=True, unbiased=False)
    return (x - m) / torch.sqrt(v + eps)
def _scatter_add(tgt, idx, src, axis=0):
    return tgt.clone().index_add_(axis, idx, src)
def _segment_sum(src, seg, n):
    out = torch.zeros((n,) + src.shape[1:], dtype=src.dtype)
    return out.index_add_(0, seg, src)
def _pad(x, pw):
    flat = tuple(v for pair in reversed(pw) for v in pair)
    return torch.nn.functional.pad(x, flat)

kernel_name = 'sequential_preLN__softmax_full_mha__dense_activation_gelu__prompt'

def setup_inputs():

    _w = (lambda a: (lambda t: t.to(torch.bfloat16) if t.is_floating_point() else t)(torch.as_tensor(a)))
    def _A_setup():
        B, S, D = 1, 2048, 512
        return {
            "x": _w((lambda *s: torch.randn(*s, dtype=torch.bfloat16) * 0.05)(B, S, D)),
            "wqkv": _w((lambda *s: torch.randn(*s, dtype=torch.bfloat16) * 0.05)(D, 3 * D)),
            "wo": _w((lambda *s: torch.randn(*s, dtype=torch.bfloat16) * 0.05)(D, D)),
        }
    _A_in = _A_setup()

    def _B_setup():
        B, S, D, F = 1, 2048, 512, 1792
        return {
            "x": _w((lambda *s: torch.randn(*s, dtype=torch.bfloat16) * 0.05)(B, S, D)),
            "w1": _w((lambda *s: torch.randn(*s, dtype=torch.bfloat16) * 0.8)(D, F) * (D ** -0.5)),
            "b1": _w((lambda *s: torch.randn(*s, dtype=torch.bfloat16) * 0.2)(F) * 0.01),
            "w2": _w((lambda *s: torch.randn(*s, dtype=torch.bfloat16) * 0.2)(F, D) * (F ** -0.5)),
            "b2": _w((lambda *s: torch.randn(*s, dtype=torch.bfloat16) * 0.2)(D) * 0.01),
        }
    _B_in = _B_setup()

    return {
        "A_x": _A_in["x"],
        "A_wqkv": _A_in["wqkv"],
        "A_wo": _A_in["wo"],
        "B_x": _B_in["x"],
        "B_w1": _B_in["w1"],
        "B_b1": _B_in["b1"],
        "B_w2": _B_in["w2"],
        "B_b2": _B_in["b2"],
    }

def reference(A_x, A_wqkv, A_wo, B_x, B_w1, B_b1, B_w2, B_b2):
    def _A_ref(x, wqkv, wo):
        B, S, D = x.shape
        H = 32; Dh = D // H
        qkv = (lambda x, *d: x.permute(*d))((x @ wqkv).reshape(B, S, 3, H, Dh), 2, 0, 3, 1, 4)
        q, k, v = qkv[0], qkv[1], qkv[2]
        scale = Dh ** -0.5
        scores = torch.einsum("bhqd,bhkd->bhqk", q, k) * scale
        p = _softmax(scores, axis=-1)
        o = torch.einsum("bhqk,bhkd->bhqd", p, v)
        return (lambda x, *d: x.permute(*d))(o, 0, 2, 1, 3).reshape(B, S, D) @ wo

    def _B_ref(x, w1, b1, w2, b2):
        h = torch.einsum("bsd,df->bsf", x, w1) + b1
        h = _gelu(h)
        return torch.einsum("bsf,fd->bsd", h, w2) + b2

    x = A_x
    h = x + _A_ref(_layernorm(x, axis=-1), A_wqkv, A_wo)
    h2 = h + _B_ref(_layernorm(h, axis=-1), B_w1, B_b1, B_w2, B_b2)
    return h2
```

```python
import re, sys

def regs(tok):
    tok = tok.strip()
    tok = tok.strip('|')
    if tok.startswith('-'): tok = tok[1:]
    tok = tok.strip('|')
    m = re.fullmatch(r'([vsa])(\d+)', tok)
    if m: return [(m.group(1), int(m.group(2)))]
    m = re.fullmatch(r'([vsa])\[(\d+):(\d+)\]', tok)
    if m: return [(m.group(1), i) for i in range(int(m.group(2)), int(m.group(3))+1)]
    if tok == 'vcc': return [('s','vcc')]
    if tok == 'exec': return [('s','exec')]
    if tok == 'm0': return [('s','m0')]
    return []

TRANS = ('v_exp_f32','v_log_f32','v_rcp_f32','v_rsq_f32','v_sqrt_f32','v_sin_f32','v_cos_f32','v_exp_f16','v_rcp_f16')
class Ins:
    def __init__(self, text, line):
        self.text = text; self.line = line
        t = text.split(';')[0].strip()
        parts = t.split(None, 1)
        self.op = parts[0]
        ops = []
        if len(parts) > 1:
            cur=''; depth=0
            for ch in parts[1]:
                if ch=='[': depth+=1
                if ch==']': depth-=1
                if ch==',' and depth==0:
                    ops.append(cur.strip()); cur=''
                else: cur+=ch
            ops.append(cur.strip())
        if ops:
            ops[-1] = ops[-1].split()[0] if ops[-1] else ''
        self.ops = ops
        self.mods = t
        op = self.op
        self.is_mfma = op.startswith('v_mfma')
        self.is_valu = op.startswith('v_') and not self.is_mfma
        self.is_ds = op.startswith('ds_')
        self.is_vmem = op.startswith('buffer_') or op.startswith('global_')
        self.is_salu = op.startswith('s_')
        self.is_trans = any(op.startswith(x) for x in TRANS)
        self.w = []; self.r = []
        R = [regs(o) for o in ops]
        if self.is_mfma:
            self.w = R[0]; self.A = R[1]; self.B = R[2]; self.C = R[3]; self.r = R[1]+R[2]+R[3]
            self.passes = 8 if '32x32' in op else 4
        elif self.is_valu:
            if op.startswith('v_cmp'):
                self.w = R[0]; self.r = sum(R[1:], [])
            elif op.startswith('v_readfirstlane') or op.startswith('v_readlane'):
                self.w = R[0]; self.r = sum(R[1:], [])
            elif op.startswith('v_permlane32_swap') or op.startswith('v_permlane16_swap'):
                self.w = R[0]+R[1]; self.r = R[0]+R[1]
            elif op.startswith('v_fmac') or op.startswith('v_dot2c') or op.startswith('v_pk_fmac'):
                self.w = R[0]; self.r = sum(R, [])
            elif op.startswith('v_add_co') or op.startswith('v_addc_co') or op.startswith('v_sub_co'):
                self.w = R[0]+R[1]; self.r = sum(R[2:], [])
            else:
                self.w = R[0]; self.r = sum(R[1:], [])
                if op.startswith('v_cndmask') and len(ops)==3: self.r += [('s','vcc')]
            if 'sdwa' in op and 'UNUSED_PRESERVE' in t: self.r += R[0]
        elif self.is_ds:
            if op.startswith('ds_read') or op.startswith('ds_bpermute') or op.startswith('ds_swizzle') or op.startswith('ds_permute'):
                self.w = R[0]; self.r = sum(R[1:], [])
            else:
                self.r = sum(R, [])
        elif self.is_vmem:
            lds = re.search(r'\blds\b', t) is not None
            if 'load' in op and not lds:
                self.w = R[0]; self.r = sum(R[1:], [])
            elif 'load' in op and lds:
                self.r = sum(R, []) + [('s','m0')]
            else:
                self.r = sum(R, [])
                self.store_data = R[0] if op.startswith('buffer_') else R[1]
        elif self.is_salu:
            if op.startswith('s_cmp') or op.startswith('s_cbranch') or op.startswith('s_branch') or op in ('s_waitcnt','s_barrier','s_nop','s_endpgm','s_setprio','s_sleep'):
                self.r = sum(R, [])
            else:
                self.w = R[0] if R else []; self.r = sum(R[1:], [])
    def states(self):
        if self.op == 's_nop':
            return int(self.ops[0], 0) + 1
        return 1

def parse(text):
    ins = []; labels = {}
    for n, line in enumerate(text.splitlines(), 1):
        t = line.split(';')[0].strip()
        if not t or t.startswith('.') or t.startswith('//'): continue
        m = re.fullmatch(r'([\w.$]+):', t)
        if m:
            labels[m.group(1)] = len(ins); continue
        ins.append(Ins(t, n))
    return ins, labels

def check_seq(seq, out):
    V = lambda rs: set(x for x in rs if x[0] in 'va')
    S = lambda rs: set(x for x in rs if x[0]=='s')
    n = len(seq)
    for i, p in enumerate(seq):
        dist = 0
        for j in range(i+1, min(n, i+40)):
            c = seq[j]
            need = 0; why = ''
            def req(k, w):
                nonlocal need, why
                if k > need: need, why = k, w
            pw = V(p.w)
            if p.is_valu and pw:
                if c.is_mfma and pw & V(c.r): req(2, 'VALU write -> MFMA read')
                if c.is_valu and ('dpp' in c.op or 'row_' in c.mods or 'quad_perm' in c.mods) and pw & V(c.r): req(2, 'VALU write -> DPP read')
                if c.op.startswith('v_permlane') and pw & V(c.r): req(2, 'VALU write -> permlane')
                if (c.op.startswith('v_readfirstlane') or c.op.startswith('v_readlane')) and pw & V(c.r): req(1, 'VALU write -> readlane')
                if p.is_trans and c.is_valu and not c.is_trans and pw & (V(c.r)): req(1, 'trans -> VALU use')
                if p.is_trans and c.is_mfma and pw & V(c.r): req(2, 'trans -> mfma')
                if p.op.startswith('v_dot2') and (c.is_valu or c.is_mfma) and c.op != p.op and pw & (V(c.r)|V(c.w)): req(3, 'dot -> other op')
            if p.is_valu and S(p.w):
                sw = S(p.w)
                if c.is_vmem and sw & S(c.r): req(5, 'VALU write SGPR -> VMEM read')
                if c.is_valu and sw & S(c.r): req(2, 'VALU write SGPR -> VALU read')
                if (c.op.startswith('v_readlane') or c.op.startswith('v_writelane')) and sw & S(c.r): req(4, 'VALU SGPR -> lane select')
            if p.is_mfma:
                D = V(p.w); k = {4:8, 8:12}[p.passes]
                if (c.is_valu or c.is_ds or c.is_vmem) and D & (V(c.r) | V(c.w)): req(k, 'MFMA D -> VALU/mem access')
                if c.is_mfma:
                    if D & (V(c.A)|V(c.B)): req(k, 'MFMA D -> MFMA A/B')
                    if D & V(c.C):
                        if list(c.C) != list(p.w): req({4:6,8:10}[p.passes], 'MFMA D -> partial SrcC')
                        elif c.passes != p.passes: req({4:6,8:10}[p.passes], 'MFMA D -> SrcC diff passes')
                    elif D & V(c.w): req(k, 'MFMA D -> MFMA D WAW (different C)')
                if c.is_valu and V(p.C) & V(c.w): req({4:3,8:7}[p.passes], 'MFMA SrcC WAR')
            if p.is_salu and ('s','m0') in p.w and c.is_vmem and ('s','m0') in c.r: req(1, 'M0 -> LDS DMA')
            if p.is_vmem and hasattr(p,'store_data') and ('x4' in p.op or 'x3' in p.op):
                if c.is_valu and V(p.store_data) & V(c.w): req(2, 'store data WAR')
            if p.is_valu and ('s','exec') in p.w and c.is_mfma: req(4, 'VALU exec -> mfma')
            if need > dist:
                out.append(f"HAZARD line {p.line} '{p.text}' -> line {c.line} '{c.text}': need {need} have {dist} ({why})")
            dist += c.states()
            if dist >= 20: break
            if c.op in ('s_branch','s_endpgm','s_setpc_b64'): break

def lint(text):
    ins, labels = parse(text)
    out = []
    check_seq(ins, out)
    for i, p in enumerate(ins):
        if p.op.startswith('s_cbranch') or p.op == 's_branch':
            tgt = p.ops[0]
            if tgt in labels:
                j = labels[tgt]
                seq = ins[max(0,i-30):i+1] + ins[j:j+30]
                o2 = []
                save = p.op
                p.op = 's_cbranch_x'
                check_seq(seq, o2)
                p.op = save
                out += o2
    return sorted(set(out))

if __name__ == '__main__':
    r = lint(open(sys.argv[1]).read())
    for x in r: print(x)
    print(len(r), 'hazards')
```

```python
import sys, struct

NAME = "sequential_preLN__softmax_full_mha__dense_activation_gelu__prompt"

WS_Q = 0x000000
WS_K = 0x200000
WS_V = 0x400000
WS_O = 0x600000
WS_H = 0x800000
WS_F = 0xA00000
WS_SIZE = 0x10000000

def f2u(x):
    return struct.unpack('<I', struct.pack('<f', x))[0]

class E:
    def __init__(self):
        self.l = []
    def __call__(self, s):
        self.l.append("    " + s)
    def label(self, s):
        self.l.append(s + ":")
    def c(self, s):
        self.l.append("    ; " + s)
    def text(self):
        return "\n".join(self.l) + "\n"

def vr(a, n=1):
    return f"v{a}" if n == 1 else f"v[{a}:{a+n-1}]"
def sr(a, n=1):
    return f"s{a}" if n == 1 else f"s[{a}:{a+n-1}]"

def srd(e, d, lo, hi, size):
    e(f"s_mov_b32 s{d}, s{lo}")
    e(f"s_mov_b32 s{d+1}, s{hi}")
    e(f"s_mov_b32 s{d+2}, {size:#x}")
    e(f"s_mov_b32 s{d+3}, 0x00020000")

def header(e, name):
    e.l.append(f".globl {name}")
    e.l.append(".p2align 8")
    e.l.append(f".type {name},@function")
    e.label(name)

def desc(name, vgpr, sgpr=96):
    acc = (vgpr + 3) // 4 * 4
    return f""".section .rodata,"a"
.p2align 6
.amdhsa_kernel {name}
  .amdhsa_next_free_vgpr {vgpr}
  .amdhsa_next_free_sgpr {sgpr}
  .amdhsa_accum_offset {acc}
  .amdhsa_group_segment_fixed_size 0
  .amdhsa_kernarg_size 88
  .amdhsa_user_sgpr_count 2
  .amdhsa_user_sgpr_kernarg_segment_ptr 1
  .amdhsa_system_sgpr_workgroup_id_x 1
.end_amdhsa_kernel
.text
"""

ATT_LDS = 131072 + 8192
ATT_NA = 4

def gen_attn(name):
    e = E()
    header(e, name)
    P = "at_"
    vQ, vC, vS0, vS1, vO, vP = 4, 16, 32, 48, 64, 80
    kf = [88, 92]
    vf = [96, 104]
    e("s_cmp_ge_u32 s2, 256")
    e(f"s_cbranch_scc1 {P}end")
    e("s_load_dwordx2 s[4:5], s[0:1], 80")
    e("v_lshrrev_b32 v2, 6, v0")
    e("v_and_b32 v3, 63, v0")
    e("v_lshlrev_b32 v1, 4, v3")
    e("v_readfirstlane_b32 s6, v2")
    e("s_and_b32 s7, s2, 7")
    e("s_lshr_b32 s8, s2, 3")
    e("s_lshr_b32 s9, s8, 3")
    e("s_lshl_b32 s7, s7, 2")
    e("s_add_u32 s7, s7, s9")
    e("s_and_b32 s8, s8, 7")
    e("s_lshl_b32 s9, s8, 3")
    e("s_add_u32 s9, s9, s6")
    e("s_lshl_b32 s16, s7, 16")
    e("s_lshl_b32 s17, s9, 10")
    e("s_add_u32 s17, s17, s16")
    e("s_lshl_b32 s18, s6, 10")
    e("s_add_u32 s18, s18, s16")
    e(f"s_add_u32 s19, s18, {WS_V:#x}")
    e(f"s_add_u32 s18, s18, {WS_K:#x}")
    e("s_lshl_b32 s20, s6, 11")
    e("s_mov_b32 s21, 8")
    e("s_waitcnt lgkmcnt(0)")
    srd(e, 12, 4, 5, WS_SIZE)
    e(f"buffer_load_dwordx4 {vr(vQ,4)}, v1, s[12:15], s17 offen")
    e.label(P+"dma")
    e("s_mov_b32 m0, s20")
    e("s_add_u32 s20, s20, 1024")
    e("buffer_load_dwordx4 v1, s[12:15], s18 offen lds")
    e("s_mov_b32 m0, s20")
    e("s_add_u32 s18, s18, 8192")
    e("buffer_load_dwordx4 v1, s[12:15], s19 offen lds")
    e(f"s_add_u32 s20, s20, {16384-1024}")
    e("s_add_u32 s19, s19, 8192")
    e("s_sub_u32 s21, s21, 1")
    e("s_cmp_lg_u32 s21, 0")
    e(f"s_cbranch_scc1 {P}dma")
    e("s_mov_b32 s22, 0x0000ffff")
    e("s_mov_b32 s23, 0x0000ffff")
    e("v_mov_b32 v2, 0x3f803f80")
    for i in range(16):
        e(f"v_mov_b32 v{vf[0]+i}, v2")
    for i in range(16):
        e(f"v_mov_b32 v{vC+i}, 0")
    e(f"s_mov_b32 s24, {ATT_NA}")
    e("s_mov_b32 s25, 0")
    e("v_and_b32 v8, 31, v3")
    e("v_lshrrev_b32 v9, 5, v3")
    e("v_lshlrev_b32 v8, 10, v8")
    e("v_lshl_add_u32 v8, v9, 4, v8")
    e("s_lshl_b32 s26, s9, 15")
    e("s_lshl_b32 s27, s7, 5")
    e("s_add_u32 s26, s26, s27")
    e(f"s_add_u32 s26, s26, {WS_O:#x}")
    nfirst = 1 + (ATT_NA*2 + 2 + 7)//8
    nfirst = min(8, (ATT_NA*2 + 2 + 7)//8)
    e(f"s_waitcnt vmcnt({16 - 2*nfirst})")
    e("s_barrier")
    e.label(P+"run")
    for i in range(16):
        e(f"v_mov_b32 v{vO+i}, 0")
    e("v_lshlrev_b32 v1, 4, v3")
    e(f"ds_read_b128 {vr(kf[0],4)}, v1")
    e(f"ds_read_b128 {vr(kf[1],4)}, v1 offset:2048")
    e("s_mov_b64 exec, s[22:23]")
    e(f"ds_read_b128 {vr(vf[0],4)}, v1 offset:1024")
    e(f"ds_read_b128 {vr(vf[0]+4,4)}, v1 offset:1280")
    e("s_mov_b64 exec, -1")
    e("s_mov_b32 s21, 0")
    e("s_waitcnt lgkmcnt(3)")
    e(f"v_mfma_f32_32x32x16_bf16 {vr(vS0,16)}, {vr(kf[0],4)}, {vr(vQ,4)}, {vr(vC,16)}")
    for i in range(4, 8):
        e(f"v_mov_b32 v{vP+i}, 0")
    e("s_nop 7")
    e.label(P+"loop")
    def tile(Sc, Sn, kuse, kload, vprev, vuse, vload, koff, voff):
        e("s_waitcnt lgkmcnt(2)")
        e(f"v_mfma_f32_32x32x16_bf16 {vr(Sn,16)}, {vr(kuse,4)}, {vr(vQ,4)}, {vr(vC,16)}")
        e(f"v_mfma_f32_32x32x16_bf16 {vr(vO,16)}, {vr(vprev+4,4)}, {vr(vP+4,4)}, {vr(vO,16)}")
        e(f"ds_read_b128 {vr(kload,4)}, v1 offset:{koff}")
        e("s_mov_b64 exec, s[22:23]")
        e(f"ds_read_b128 {vr(vload,4)}, v1 offset:{voff}")
        e(f"ds_read_b128 {vr(vload+4,4)}, v1 offset:{voff+256}")
        e("s_mov_b64 exec, -1")
        X = lambda i: e(f"v_exp_f32 v{Sc+i}, v{Sc+i}")
        Cv = lambda p: e(f"v_cvt_pk_bf16_f32 v{vP+p}, v{Sc+2*p}, v{Sc+2*p+1}")
        X(0); X(1); X(2); X(3); Cv(0); X(4); X(5); Cv(1); X(6); X(7); Cv(2); X(8); Cv(3); X(9)
        e("s_waitcnt lgkmcnt(3)")
        e(f"v_mfma_f32_32x32x16_bf16 {vr(vO,16)}, {vr(vuse,4)}, {vr(vP,4)}, {vr(vO,16)}")
        X(10); X(11); Cv(4); X(12); X(13); Cv(5); X(14); X(15); Cv(6)
        e("s_nop 0") if False else None
        Cv(7)
    tile(vS0, vS1, kf[1], kf[0], vf[1], vf[0], vf[1], 4096, 2048+1024)
    tile(vS1, vS0, kf[0], kf[1], vf[0], vf[1], vf[0], 6144, 4096+1024)
    e("v_add_u32 v1, 4096, v1")
    e("s_add_u32 s21, s21, 1")
    e("s_cmp_lg_u32 s21, s24")
    e(f"s_cbranch_scc1 {P}nobar")
    e("s_waitcnt vmcnt(0)")
    e("s_barrier")
    e.label(P+"nobar")
    e("s_cmp_lt_u32 s21, 32")
    e(f"s_cbranch_scc1 {P}loop")
    e("s_nop 0")
    e(f"v_mfma_f32_32x32x16_bf16 {vr(vO,16)}, {vr(vf[1]+4,4)}, {vr(vP+4,4)}, {vr(vO,16)}")
    e("s_waitcnt lgkmcnt(0)")
    e("s_nop 7")
    e("s_nop 3")
    e("s_cmp_lg_u32 s25, 0")
    e(f"s_cbranch_scc1 {P}fin")
    e(f"v_mul_f32 v10, 0, v{vO}")
    for i in range(1, 8):
        e(f"v_fmac_f32 v10, 0, v{vO+i}")
    e(f"s_mov_b32 s28, {f2u(2.0**-100):#x}")
    e(f"s_mov_b32 s29, {f2u(2.0**100):#x}")
    e(f"v_cmp_le_f32 s[30:31], s28, v{vO+8}")
    e(f"v_cmp_ge_f32 s[32:33], s29, v{vO+8}")
    e("v_cmp_eq_f32 vcc, 0, v10")
    e("s_nop 1")
    e("s_and_b64 s[30:31], s[30:31], s[32:33]")
    e("s_and_b64 s[30:31], s[30:31], vcc")
    e("s_cmp_eq_u64 s[30:31], -1")
    e(f"s_cbranch_scc1 {P}fin")
    e("s_mov_b32 s25, 1")
    e("s_mov_b32 s24, -1")
    e("v_lshlrev_b32 v1, 4, v3")
    e("v_mov_b32 v10, 0xff800000")
    e("s_mov_b32 s21, 0")
    e.label(P+"mx")
    e(f"ds_read_b128 {vr(kf[0],4)}, v1")
    e("s_waitcnt lgkmcnt(0)")
    e(f"v_mfma_f32_32x32x16_bf16 {vr(vS0,16)}, {vr(kf[0],4)}, {vr(vQ,4)}, 0")
    e("v_add_u32 v1, 2048, v1")
    e("s_nop 7")
    e("s_nop 3")
    for i in range(0, 16, 2):
        e(f"v_max3_f32 v10, v10, v{vS0+i}, v{vS0+i+1}")
    e("s_add_u32 s21, s21, 1")
    e("s_cmp_lt_u32 s21, 64")
    e(f"s_cbranch_scc1 {P}mx")
    e("v_mov_b32 v11, v10")
    e("s_nop 1")
    e("v_permlane32_swap_b32 v10, v11")
    e("s_nop 1")
    e("v_max_f32 v10, v10, v11")
    e("v_sub_f32 v10, 0, v10")
    for i in range(16):
        e(f"v_mov_b32 v{vC+i}, v10")
    e(f"s_branch {P}run")
    e.label(P+"fin")
    e(f"v_rcp_f32 v10, v{vO+8}")
    e("s_nop 0")
    for i in range(8):
        e(f"v_mul_f32 v{vO+i}, v{vO+i}, v10")
    for i in range(4):
        e(f"v_cvt_pk_bf16_f32 v{12+i}, v{vO+2*i}, v{vO+2*i+1}")
    e("buffer_store_dwordx4 v[12:15], v8, s[12:15], s26 offen")
    e.label(P+"end")
    e("s_endpgm")
    return e.text() + desc(name, 112, 48), ATT_LDS

T1_S = 5
T1_SLOT = 32768
T1_LDS = T1_S * T1_SLOT

def t1_loader(e, P, wstride, nch=8):
    S = T1_S
    e("s_sub_u32 s7, s6, 4")
    e("v_and_b32 v3, 63, v0")
    e("v_lshrrev_b32 v4, 3, v3")
    e("s_lshl_b32 s8, s7, 3")
    e("v_add_u32 v4, s8, v4")
    e("v_lshlrev_b32 v4, 10, v4")
    e("v_lshrrev_b32 v5, 4, v3")
    e("s_and_b32 s8, s7, 1")
    e("s_lshl_b32 s8, s8, 2")
    e("v_add_u32 v6, s8, v5")
    e("v_and_b32 v7, 7, v3")
    e("v_xor_b32 v6, v6, v7")
    e("v_lshl_add_u32 v1, v6, 4, v4")
    e("s_lshl_b32 s8, s7, 2")
    e("v_add_u32 v4, s8, v5")
    e(f"s_mov_b32 s9, {wstride}")
    e("v_mul_lo_u32 v4, v4, s9")
    e("v_bfe_u32 v6, v3, 2, 2")
    e("v_xor_b32 v6, v6, v5")
    e("v_and_b32 v7, 3, v3")
    e("v_lshl_add_u32 v6, v6, 2, v7")
    e("v_lshl_add_u32 v2, v6, 4, v4")
    e("s_lshl_b32 s42, s7, 10")
    e("s_mov_b32 s43, 0")
    def issue():
        e("s_add_u32 s44, s42, s43")
        e("s_mov_b32 s45, s40")
        e("s_mov_b32 s46, s41")
        for i in range(4):
            e("s_mov_b32 m0, s44")
            e("s_add_u32 s44, s44, 4096")
            e("buffer_load_dwordx4 v1, s[12:15], s45 offen lds")
            if i < 3: e("s_add_u32 s45, s45, 32768")
        for i in range(4):
            e("s_mov_b32 m0, s44")
            e("s_add_u32 s44, s44, 4096")
            e("buffer_load_dwordx4 v2, s[16:19], s46 offen lds")
            if i < 3: e(f"s_add_u32 s46, s46, {16*wstride}")
        e("s_add_u32 s40, s40, 128")
        e(f"s_add_u32 s41, s41, {64*wstride}")
        e(f"s_add_u32 s43, s43, {T1_SLOT}")
        e(f"s_cmp_eq_u32 s43, {S*T1_SLOT}")
        e("s_cselect_b32 s43, 0, s43")
    e(f"s_mov_b32 s47, {S}")
    e.label(P+"ld0")
    issue()
    e("s_sub_u32 s47, s47, 1")
    e("s_cmp_lg_u32 s47, 0")
    e(f"s_cbranch_scc1 {P}ld0")
    def allowed(c):
        issued = min(nch, S + max(0, c-1))
        return max(0, issued - (c+2)) * 8
    e(f"s_waitcnt vmcnt({allowed(0)})")
    e("s_barrier")
    nsteady = nch - S
    al = [allowed(c) for c in range(1, nsteady+1)]
    assert len(set(al)) <= 1 or True
    e(f"s_mov_b32 s47, {nsteady}")
    e.label(P+"ld1")
    e(f"s_waitcnt vmcnt({min(al)})")
    e("s_barrier")
    issue()
    e("s_sub_u32 s47, s47, 1")
    e("s_cmp_lg_u32 s47, 0")
    e(f"s_cbranch_scc1 {P}ld1")
    for c in range(nsteady+1, nch+1):
        e(f"s_waitcnt vmcnt({allowed(c)})")
        e("s_barrier")
    e("s_endpgm")

def t1_compute_addr(e, mode):
    e("s_lshr_b32 s7, s6, 1")
    e("s_and_b32 s8, s6, 1")
    e("v_and_b32 v3, 63, v0")
    e("v_and_b32 v4, 31, v3")
    e("v_lshrrev_b32 v5, 5, v3")
    e("v_bfe_u32 v6, v3, 1, 3")
    e("v_xor_b32 v6, v6, v5")
    e("v_lshlrev_b32 v6, 4, v6")
    e("s_lshl_b32 s9, s7, 6")
    e("s_lshl_b32 s10, s8, 5")
    e("s_add_u32 s9, s9, s10")
    e("v_add_u32 v7, s9, v4")
    e("v_lshlrev_b32 v7, 7, v7")
    for s in range(4):
        e(f"v_xor_b32 v{8+s}, {s<<5}, v6")
        e(f"v_add_u32 v{8+s}, v{8+s}, v7")
        e(f"v_xor_b32 v{12+s}, 4096, v{8+s}")
    e("v_lshrrev_b32 v6, 4, v3")
    e("v_bfe_u32 v7, v3, 2, 2")
    e("v_and_b32 v18, 3, v3")
    e("v_and_b32 v19, 1, v6")
    e("v_lshl_add_u32 v18, v19, 2, v18")
    if mode == 'generic':
        e("v_and_b32 v19, 1, v18")
        e("v_lshlrev_b32 v19, 2, v19")
        e("v_lshrrev_b32 v18, 1, v18")
        e("v_or_b32 v18, v18, v19")
    else:
        e("v_and_b32 v19, 1, v18")
        e("v_lshlrev_b32 v19, 1, v19")
        e("v_bfe_u32 v20, v18, 1, 1")
        e("v_and_b32 v18, 4, v18")
        e("v_or3_b32 v18, v18, v19, v20")
    e("v_lshrrev_b32 v6, 1, v6")
    e("v_lshl_add_u32 v6, v6, 3, v7")
    e("v_lshlrev_b32 v6, 8, v6")
    e("s_lshl_b32 s9, s8, 1")
    e("s_add_u32 s9, s9, s7")
    e("v_xor_b32 v7, s9, v7")
    e("v_lshlrev_b32 v7, 6, v7")
    e("v_add3_u32 v16, v6, v7, 0")
    e("v_lshl_add_u32 v16, v18, 3, v16")
    e("v_add_u32 v16, 16384, v16")
    e("v_xor_b32 v17, 64, v16")

XF = [[32, 36], [48, 52]]
WF = [[40, 44], [56, 60]]
ACC = 64
def t1_reads(e, buf, s):
    e(f"ds_read_b128 {vr(XF[buf][0],4)}, v{8+s}")
    e(f"ds_read_b128 {vr(XF[buf][1],4)}, v{12+s}")
    for k in range(2):
        e(f"ds_read_b64_tr_b16 {vr(WF[buf][k],2)}, v{16+k} offset:{s*4096}")
        e(f"ds_read_b64_tr_b16 {vr(WF[buf][k]+2,2)}, v{16+k} offset:{s*4096+1024}")

def t1_mainloop(e, P, vmode):
    S = T1_S
    e("s_barrier")
    t1_reads(e, 0, 0)
    e("s_mov_b32 s20, 0")
    e("s_mov_b32 s21, 0")
    e.label(P+"kloop")
    e(f"s_add_u32 s22, s21, {T1_SLOT}")
    e(f"s_cmp_eq_u32 s22, {S*T1_SLOT}")
    e("s_cselect_b32 s22, 0, s22")
    e("s_sub_u32 s23, s22, s21")
    e("s_mov_b32 s21, s22")
    for s in range(4):
        buf = s & 1
        nb = buf ^ 1
        ns = (s + 1) & 3
        t1_reads(e, nb, ns)
        adv = []
        if s < 3:
            adv += [8+ns, 12+ns] if ns != 0 else []
        if s == 2:
            adv += [8, 12, 16, 17]
        e("s_waitcnt lgkmcnt(6)")
        dots = []
        for i in range(4):
            dots.append(f"v_dot2c_f32_bf16 v{22+(i&1)}, v{XF[buf][0]+i}, v21")
            dots.append(f"v_dot2c_f32_bf16 v{24+(i&1)}, v{XF[buf][0]+i}, v{XF[buf][0]+i}")
            dots.append(f"v_dot2c_f32_bf16 v{26+(i&1)}, v{WF[buf][0]+i}, v21")
        fill = dots + [f"v_add_u32 v{a}, s23, v{a}" for a in adv]
        per = (len(fill) + 3) // 4
        idx = 0
        for k in range(2):
            for kp in range(2):
                a = ACC + 16*(2*k + kp)
                if vmode:
                    e(f"v_mfma_f32_32x32x16_bf16 {vr(a,16)}, {vr(XF[buf][kp],4)}, {vr(WF[buf][k],4)}, {vr(a,16)}")
                else:
                    e(f"v_mfma_f32_32x32x16_bf16 {vr(a,16)}, {vr(WF[buf][k],4)}, {vr(XF[buf][kp],4)}, {vr(a,16)}")
                for t in fill[idx:idx+per]: e(t)
                idx += per
    e("s_barrier")
    e("s_add_u32 s20, s20, 1")
    e("s_cmp_lt_u32 s20, 8")
    e(f"s_cbranch_scc1 {P}kloop")
    e("s_waitcnt lgkmcnt(0)")

def t1_stats(e, scale_sreg):
    e("s_nop 2")
    e("v_add_f32 v22, v22, v23")
    e("v_add_f32 v24, v24, v25")
    e("v_add_f32 v26, v26, v27")
    e("v_mov_b32 v23, v22")
    e("v_mov_b32 v25, v24")
    e("v_mov_b32 v27, v26")
    e("s_nop 1")
    e("v_permlane32_swap_b32 v22, v23")
    e("v_permlane32_swap_b32 v24, v25")
    e("v_permlane32_swap_b32 v26, v27")
    e("s_nop 1")
    e("v_add_f32 v22, v22, v23")
    e("v_add_f32 v24, v24, v25")
    e("v_add_f32 v26, v26, v27")
    e(f"v_mul_f32 v22, {f2u(1.0/512):#x}, v22")
    e(f"v_mul_f32 v24, {f2u(1.0/512):#x}, v24")
    e("v_fma_f32 v24, -v22, v22, v24")
    e("v_max_f32 v24, 0, v24")
    e(f"v_add_f32 v24, {f2u(1e-5):#x}, v24")
    e("v_rsq_f32 v24, v24")
    e("s_nop 0")
    e(f"v_mul_f32 v24, s{scale_sreg}, v24")
    e("v_mul_f32 v22, v22, v24")
    e("v_sub_f32 v22, 0, v22")
    e("s_lshl_b32 s9, s7, 6")
    e("s_lshl_b32 s10, s8, 5")
    e("s_add_u32 s9, s9, s10")
    e("v_add_u32 v28, s9, v4")
    e("v_lshlrev_b32 v28, 2, v28")
    e("ds_write_b32 v28, v24")
    e("ds_write_b32 v28, v22 offset:512")

def t1_cs_write(e, mode):
    e("v_lshrrev_b32 v29, 2, v4")
    if mode == 'generic':
        e("v_and_b32 v30, 1, v29")
        e("v_lshlrev_b32 v30, 2, v30")
        e("v_lshrrev_b32 v29, 1, v29")
        e("v_or_b32 v29, v29, v30")
    else:
        e("v_and_b32 v30, 1, v29")
        e("v_lshlrev_b32 v30, 1, v30")
        e("v_bfe_u32 v31, v29, 1, 1")
        e("v_and_b32 v29, 4, v29")
        e("v_or3_b32 v29, v29, v30, v31")
    e("v_and_b32 v30, 3, v4")
    e("v_lshl_add_u32 v29, v29, 2, v30")
    e("s_lshl_b32 s9, s8, 6")
    e("s_lshl_b32 s10, s7, 5")
    e("s_add_u32 s9, s9, s10")
    e("v_add_u32 v30, s9, v29")
    e("v_lshlrev_b32 v30, 2, v30")
    e("ds_write_b32 v30, v26 offset:1024")
    e("s_waitcnt lgkmcnt(0)")
    e("s_barrier")

def t1_init(e):
    e("v_mov_b32 v21, 0x3f803f80")
    for i in range(22, 28): e(f"v_mov_b32 v{i}, 0")
    for i in range(64): e(f"v_mov_b32 v{ACC+i}, 0")


def sadd(e, d, a, b):
    e(f"s_add_u32 s{d}, s{a}, {b}")

def tile_bases(e):
    for k in range(2):
        e(f"s_xor_b32 s9, s7, {k}")
        e("s_lshl_b32 s9, s9, 5")
        e("s_lshl_b32 s10, s8, 6")
        e(f"s_add_u32 s{50+k}, s9, s10")
    for kp in range(2):
        e(f"s_xor_b32 s9, s8, {kp}")
        e("s_lshl_b32 s9, s9, 5")
        e("s_lshl_b32 s10, s7, 6")
        e(f"s_add_u32 s{52+kp}, s9, s10")

def read_tok_stats(e):
    for kp in range(2):
        e(f"v_add_u32 v28, s{52+kp}, v4")
        e("v_lshlrev_b32 v28, 2, v28")
        e(f"ds_read2st64_b32 {vr(8+2*kp,2)}, v28 offset0:0 offset1:2")

def gen_qkv(name):
    e = E(); P = "q_"
    header(e, name)
    e("s_cmp_ge_u32 s2, 192")
    e(f"s_cbranch_scc1 {P}end")
    e("s_load_dwordx4 s[24:27], s[0:1], 0")
    e("s_load_dwordx2 s[28:29], s[0:1], 80")
    e("v_lshrrev_b32 v2, 6, v0")
    e("s_and_b32 s3, s2, 7")
    e("s_lshr_b32 s4, s2, 3")
    e("v_readfirstlane_b32 s6, v2")
    e("s_and_b32 s5, s3, 3")
    e("s_lshl_b32 s5, s5, 2")
    e("s_and_b32 s9, s4, 3")
    e("s_add_u32 s30, s5, s9")
    e("s_lshr_b32 s5, s3, 2")
    e("s_mul_i32 s5, s5, 6")
    e("s_lshr_b32 s9, s4, 2")
    e("s_add_u32 s31, s5, s9")
    e("s_waitcnt lgkmcnt(0)")
    srd(e, 12, 24, 25, 2048*512*2)
    srd(e, 16, 26, 27, 512*1536*2)
    srd(e, 32, 28, 29, WS_SIZE)
    e("s_cmp_ge_u32 s6, 4")
    e(f"s_cbranch_scc0 {P}comp")
    e("s_lshl_b32 s40, s30, 17")
    e("s_lshl_b32 s41, s31, 8")
    t1_loader(e, P, 3072)
    e.label(P+"comp")
    t1_compute_addr(e, 'qk')
    t1_init(e)
    tile_bases(e)
    e("s_cmp_ge_u32 s31, 8")
    e(f"s_cbranch_scc1 {P}vpath")
    t1_mainloop(e, P+"a", False)
    e(f"s_mov_b32 s36, {f2u(0.25*1.4426950408889634):#x}")
    e("s_cmp_lt_u32 s31, 4")
    e("s_cselect_b32 s36, s36, 1.0")
    t1_stats(e, 36)
    t1_cs_write(e, 'qk')
    read_tok_stats(e)
    for k in range(2):
        e(f"v_lshl_add_u32 v28, v5, 3, s{50+k}")
        e("v_lshlrev_b32 v28, 2, v28")
        for q, off in enumerate((0, 16, 64, 80)):
            e(f"ds_read_b128 {vr(32+16*k+4*q,4)}, v28 offset:{1024+off}")
    e("s_and_b32 s9, s31, 3")
    e("s_lshl_b32 s9, s9, 19")
    e("s_cmp_lt_u32 s31, 4")
    e(f"s_cselect_b32 s10, {WS_Q:#x}, {WS_K:#x}")
    e("s_add_u32 s37, s9, s10")
    e("s_lshl_b32 s9, s30, 12")
    e("s_add_u32 s37, s37, s9")
    e("v_lshlrev_b32 v1, 4, v3")
    e("s_waitcnt lgkmcnt(0)")
    for k in range(2):
        for kp in range(2):
            a = ACC + 16*(2*k+kp)
            st = 8 + 2*kp
            for p in range(8):
                tmp = 16 + 2*(p & 1)
                e(f"v_pk_mul_f32 {vr(tmp,2)}, {vr(32+16*k+2*p,2)}, {vr(st,2)} op_sel:[0,1] op_sel_hi:[1,1]")
                e(f"v_pk_fma_f32 {vr(a+2*p,2)}, {vr(a+2*p,2)}, {vr(st,2)}, {vr(tmp,2)} op_sel_hi:[1,0,1]")
            for p in range(8):
                e(f"v_cvt_pk_bf16_f32 v{a+p}, v{a+2*p}, v{a+2*p+1}")
            e(f"s_lshl_b32 s9, s{50+k}, 12")
            e(f"s_lshl_b32 s10, s{52+kp}, 5")
            e("s_add_u32 s9, s9, s10")
            e("s_add_u32 s9, s9, s37")
            e("s_add_u32 s10, s9, 65536")
            e(f"buffer_store_dwordx4 {vr(a,4)}, v1, s[32:35], s9 offen")
            e(f"buffer_store_dwordx4 {vr(a+4,4)}, v1, s[32:35], s10 offen")
    e("s_endpgm")
    e.label(P+"vpath")
    t1_mainloop(e, P+"b", True)
    e("s_mov_b32 s36, 1.0")
    t1_stats(e, 36)
    t1_cs_write(e, 'qk')
    for k in range(2):
        e(f"v_add_u32 v28, s{50+k}, v29")
        e("v_lshlrev_b32 v28, 2, v28")
        e(f"ds_read_b32 v{8+2*k}, v28 offset:1024")
    for kp in range(2):
        e(f"v_lshl_add_u32 v28, v5, 2, s{52+kp}")
        e("v_lshlrev_b32 v28, 2, v28")
        for g in range(4):
            e(f"ds_read_b128 {vr(128+32*kp+4*g,4)}, v28 offset:{32*g}")
            e(f"ds_read_b128 {vr(144+32*kp+4*g,4)}, v28 offset:{512+32*g}")
        e("s_waitcnt lgkmcnt(0)")
    e("v_lshrrev_b32 v1, 4, v4")
    e("v_lshlrev_b32 v1, 16, v1")
    e("v_lshl_add_u32 v1, v5, 9, v1")
    e("v_and_b32 v2, 15, v4")
    e("v_lshl_add_u32 v1, v2, 4, v1")
    e("s_and_b32 s9, s31, 3")
    e("s_lshl_b32 s9, s9, 19")
    e(f"s_add_u32 s37, s9, {WS_V:#x}")
    e("s_lshl_b32 s9, s30, 12")
    e("s_add_u32 s37, s37, s9")
    for k in range(2):
        for kp in range(2):
            a = ACC + 16*(2*k+kp)
            for p in range(8):
                tmp = 16 + 2*(p & 1)
                e(f"v_pk_mul_f32 {vr(tmp,2)}, {vr(144+32*kp+2*p,2)}, {vr(8+2*k,2)} op_sel_hi:[1,0]")
                e(f"v_pk_fma_f32 {vr(a+2*p,2)}, {vr(a+2*p,2)}, {vr(128+32*kp+2*p,2)}, {vr(tmp,2)}")
            for p in range(8):
                e(f"v_cvt_pk_bf16_f32 v{a+p}, v{a+2*p}, v{a+2*p+1}")
            e(f"s_lshl_b32 s9, s{50+k}, 12")
            e(f"s_lshl_b32 s10, s{52+kp}, 5")
            e("s_add_u32 s9, s9, s10")
            e("s_add_u32 s9, s9, s37")
            e(f"buffer_store_dwordx4 {vr(a,4)}, v1, s[32:35], s9 offen")
            e(f"buffer_store_dwordx4 {vr(a+4,4)}, v1, s[32:35], s9 offen offset:256")
    e.label(P+"end")
    e("s_endpgm")
    return e.text() + desc(name, 192, 64), T1_LDS

def gen_ffn1(name):
    e = E(); P = "f1_"
    header(e, name)
    e("s_cmp_ge_u32 s2, 224")
    e(f"s_cbranch_scc1 {P}end")
    e("s_load_dwordx4 s[24:27], s[0:1], 32")
    e("s_load_dwordx2 s[28:29], s[0:1], 80")
    e("v_lshrrev_b32 v2, 6, v0")
    e("s_and_b32 s3, s2, 7")
    e("s_lshr_b32 s4, s2, 3")
    e("v_readfirstlane_b32 s6, v2")
    e("s_lshl_b32 s5, s3, 1")
    e("s_and_b32 s9, s4, 1")
    e("s_add_u32 s30, s5, s9")
    e("s_lshr_b32 s31, s4, 1")
    e("s_waitcnt lgkmcnt(0)")
    srd(e, 32, 28, 29, WS_SIZE)
    srd(e, 12, 28, 29, WS_SIZE)
    srd(e, 16, 24, 25, 512*1792*2)
    srd(e, 36, 26, 27, 1792*2)
    e("s_cmp_ge_u32 s6, 4")
    e(f"s_cbranch_scc0 {P}comp")
    e("s_lshl_b32 s40, s30, 17")
    e(f"s_add_u32 s40, s40, {WS_H:#x}")
    e("s_lshl_b32 s41, s31, 8")
    t1_loader(e, P, 3584)
    e.label(P+"comp")
    t1_compute_addr(e, 'generic')
    t1_init(e)
    tile_bases(e)
    e("v_lshlrev_b32 v1, 5, v5")
    for k in range(2):
        e("s_lshl_b32 s9, s31, 7")
        e(f"s_add_u32 s9, s9, s{50+k}")
        e("s_lshl_b32 s9, s9, 1")
        e(f"buffer_load_dwordx4 {vr(128+8*k,4)}, v1, s[36:39], s9 offen")
        e(f"buffer_load_dwordx4 {vr(132+8*k,4)}, v1, s[36:39], s9 offen offset:16")
    t1_mainloop(e, P, False)
    e("s_mov_b32 s48, 1.0")
    t1_stats(e, 48)
    t1_cs_write(e, 'generic')
    read_tok_stats(e)
    for k in range(2):
        e(f"v_lshl_add_u32 v28, v5, 4, s{50+k}")
        e("v_lshlrev_b32 v28, 2, v28")
        for q in range(4):
            e(f"ds_read_b128 {vr(32+16*k+4*q,4)}, v28 offset:{1024+16*q}")
    e("s_waitcnt vmcnt(0)")
    for k in range(2):
        for i in range(8):
            e(f"v_lshlrev_b32 v{144+16*k+2*i}, 16, v{128+8*k+i}")
            e(f"v_and_b32 v{144+16*k+2*i+1}, 0xffff0000, v{128+8*k+i}")
    GA = -2.0*0.7978845608028654*1.4426950408889634
    GB = GA*0.044715
    e(f"v_mov_b32 v12, {f2u(GA):#x}")
    e(f"v_mov_b32 v13, {f2u(GB):#x}")
    e("s_movk_i32 s9, 3584")
    e("v_mul_lo_u32 v1, v4, s9")
    e("v_lshl_add_u32 v1, v5, 5, v1")
    e("s_lshl_b32 s9, s30, 7")
    e("s_mul_i32 s49, s9, 3584")
    e("s_lshl_b32 s9, s31, 8")
    e("s_add_u32 s49, s49, s9")
    e(f"s_add_u32 s49, s49, {WS_F:#x}")
    e("s_waitcnt lgkmcnt(0)")
    for k in range(2):
        for kp in range(2):
            a = ACC + 16*(2*k+kp)
            st = 8 + 2*kp
            for p0 in range(0, 8, 2):
                T = [(p0, 16, 20), (p0+1, 18, 22)]
                for p, ta, tb in T:
                    e(f"v_pk_fma_f32 {vr(ta,2)}, {vr(32+16*k+2*p,2)}, {vr(st,2)}, {vr(144+16*k+2*p,2)} op_sel:[0,1,0] op_sel_hi:[1,1,1]")
                for p, ta, tb in T:
                    e(f"v_pk_fma_f32 {vr(a+2*p,2)}, {vr(a+2*p,2)}, {vr(st,2)}, {vr(ta,2)} op_sel_hi:[1,0,1]")
                for p, ta, tb in T:
                    e(f"v_pk_mul_f32 {vr(ta,2)}, {vr(a+2*p,2)}, {vr(a+2*p,2)}")
                for p, ta, tb in T:
                    e(f"v_pk_fma_f32 {vr(ta,2)}, {vr(ta,2)}, v[12:13], v[12:13] op_sel:[0,1,0] op_sel_hi:[1,1,0]")
                for p, ta, tb in T:
                    e(f"v_pk_mul_f32 {vr(ta,2)}, {vr(ta,2)}, {vr(a+2*p,2)}")
                for p, ta, tb in T:
                    e(f"v_exp_f32 v{ta}, v{ta}")
                    e(f"v_exp_f32 v{ta+1}, v{ta+1}")
                for p, ta, tb in T:
                    e(f"v_pk_add_f32 {vr(ta,2)}, {vr(ta,2)}, 1.0 op_sel_hi:[1,0]")
                for p, ta, tb in T:
                    e(f"v_rcp_f32 v{ta}, v{ta}")
                    e(f"v_rcp_f32 v{ta+1}, v{ta+1}")
                for p, ta, tb in T:
                    e(f"v_pk_mul_f32 {vr(a+2*p,2)}, {vr(a+2*p,2)}, {vr(ta,2)}")
            for p in range(8):
                e(f"v_cvt_pk_bf16_f32 v{a+p}, v{a+2*p}, v{a+2*p+1}")
            e(f"s_mul_i32 s9, s{52+kp}, 3584")
            e(f"s_lshl_b32 s10, s{50+k}, 1")
            e("s_add_u32 s9, s9, s10")
            e("s_add_u32 s9, s9, s49")
            e(f"buffer_store_dwordx4 {vr(a,4)}, v1, s[32:35], s9 offen")
            e(f"buffer_store_dwordx4 {vr(a+4,4)}, v1, s[32:35], s9 offen offset:16")
    e.label(P+"end")
    e("s_endpgm")
    return e.text() + desc(name, 192, 64), T1_LDS

T2_S = 8
T2_SLOT = 16384
T2_LDS = T2_S * T2_SLOT

def t2_loader(e, P, xstride, wstride, nch):
    S = T2_S
    e("s_sub_u32 s7, s6, 4")
    e("v_and_b32 v3, 63, v0")
    e("v_lshrrev_b32 v4, 3, v3")
    e("s_lshl_b32 s8, s7, 3")
    e("v_add_u32 v4, s8, v4")
    e(f"s_mov_b32 s9, {xstride}")
    e("v_mul_lo_u32 v8, v4, s9")
    e("v_lshrrev_b32 v5, 4, v3")
    e("s_and_b32 s8, s7, 1")
    e("s_lshl_b32 s8, s8, 2")
    e("v_add_u32 v6, s8, v5")
    e("v_and_b32 v7, 7, v3")
    e("v_xor_b32 v6, v6, v7")
    e("v_lshl_add_u32 v1, v6, 4, v8")
    e(f"s_mov_b32 s9, {wstride}")
    e("v_mul_lo_u32 v8, v4, s9")
    e("v_bfe_u32 v6, v3, 2, 1")
    e("v_and_b32 v5, 1, v5")
    e("v_xor_b32 v6, v6, v5")
    e("v_and_b32 v7, 3, v3")
    e("v_lshl_add_u32 v6, v6, 2, v7")
    e("v_lshl_add_u32 v2, v6, 4, v8")
    e("s_lshl_b32 s42, s7, 10")
    e("s_mov_b32 s43, 0")
    def issue():
        e("s_add_u32 s44, s42, s43")
        e(f"s_add_u32 s45, s40, {32*xstride}")
        e(f"s_add_u32 s46, s41, {32*wstride}")
        e("s_mov_b32 m0, s44")
        e("s_add_u32 s44, s44, 4096")
        e("buffer_load_dwordx4 v1, s[12:15], s40 offen lds")
        e("s_mov_b32 m0, s44")
        e("s_add_u32 s44, s44, 4096")
        e("buffer_load_dwordx4 v1, s[12:15], s45 offen lds")
        e("s_mov_b32 m0, s44")
        e("s_add_u32 s44, s44, 4096")
        e("buffer_load_dwordx4 v2, s[16:19], s41 offen lds")
        e("s_mov_b32 m0, s44")
        e("s_add_u32 s40, s40, 128")
        e("buffer_load_dwordx4 v2, s[16:19], s46 offen lds")
        e(f"s_add_u32 s41, s41, {64*wstride}")
        e(f"s_add_u32 s43, s43, {T2_SLOT}")
        e(f"s_and_b32 s43, s43, {S*T2_SLOT-1}")
    n0 = min(S, nch)
    e(f"s_mov_b32 s47, {n0}")
    e.label(P+"ld0")
    issue()
    e("s_sub_u32 s47, s47, 1")
    e("s_cmp_lg_u32 s47, 0")
    e(f"s_cbranch_scc1 {P}ld0")
    def allowed(c):
        issued = min(nch, S + max(0, c-1))
        return max(0, issued - (c+2)) * 4
    e(f"s_waitcnt vmcnt({allowed(0)})")
    e("s_barrier")
    nsteady = max(0, nch - S)
    if nsteady:
        al = [allowed(c) for c in range(1, nsteady+1)]
        e(f"s_mov_b32 s47, {nsteady}")
        e.label(P+"ld1")
        e(f"s_waitcnt vmcnt({min(al)})")
        e("s_barrier")
        issue()
        e("s_sub_u32 s47, s47, 1")
        e("s_cmp_lg_u32 s47, 0")
        e(f"s_cbranch_scc1 {P}ld1")
    for c in range(nsteady+1, nch+1):
        e(f"s_waitcnt vmcnt({allowed(c)})")
        e("s_barrier")
    e("s_endpgm")

def t2_compute(e, P, nch):
    S = T2_S
    e("v_bfe_u32 v6, v3, 1, 3")
    e("v_xor_b32 v6, v6, v5")
    e("v_lshlrev_b32 v6, 4, v6")
    e("s_lshl_b32 s9, s7, 5")
    e("v_add_u32 v7, s9, v4")
    e("v_lshlrev_b32 v7, 7, v7")
    for s in range(4):
        e(f"v_xor_b32 v{8+s}, {s<<5}, v6")
        e(f"v_add_u32 v{8+s}, v{8+s}, v7")
    e("v_lshrrev_b32 v6, 4, v3")
    e("v_bfe_u32 v7, v3, 2, 2")
    e("v_and_b32 v18, 3, v3")
    e("v_and_b32 v19, 1, v6")
    e("v_lshl_add_u32 v18, v19, 2, v18")
    e("v_and_b32 v19, 1, v18")
    e("v_lshlrev_b32 v19, 2, v19")
    e("v_lshrrev_b32 v18, 1, v18")
    e("v_or_b32 v18, v18, v19")
    e("v_lshrrev_b32 v6, 1, v6")
    e("v_lshl_add_u32 v6, v6, 3, v7")
    e("v_lshlrev_b32 v6, 7, v6")
    e("v_lshrrev_b32 v7, 1, v7")
    e("v_xor_b32 v7, s8, v7")
    e("v_lshlrev_b32 v7, 6, v7")
    e("v_add_u32 v12, v6, v7")
    e("v_lshl_add_u32 v12, v18, 3, v12")
    e("v_add_u32 v12, 8192, v12")
    for i in range(16): e(f"v_mov_b32 v{64+i}, 0")
    XB = [80, 112]
    def reads(buf):
        b = XB[buf]
        for s in range(4):
            e(f"ds_read_b128 {vr(b+8*s,4)}, v{8+s}")
            e(f"ds_read_b64_tr_b16 {vr(b+8*s+4,2)}, v12 offset:{s*2048}")
            e(f"ds_read_b64_tr_b16 {vr(b+8*s+6,2)}, v12 offset:{s*2048+512}")
    def advance():
        e(f"s_add_u32 s22, s21, {T2_SLOT}")
        e(f"s_and_b32 s22, s22, {S*T2_SLOT-1}")
        e("s_sub_u32 s23, s22, s21")
        e("s_mov_b32 s21, s22")
        for a in (8, 9, 10, 11, 12):
            e(f"v_add_u32 v{a}, s23, v{a}")
    e("s_mov_b32 s21, 0")
    e("s_mov_b32 s20, 0")
    e("s_barrier")
    reads(0)
    e.label(P+"kloop")
    for half in range(2):
        buf = half
        advance()
        reads(buf ^ 1)
        e("s_waitcnt lgkmcnt(12)")
        b = XB[buf]
        for s in range(4):
            e(f"v_mfma_f32_32x32x16_bf16 v[64:79], {vr(b+8*s+4,4)}, {vr(b+8*s,4)}, v[64:79]")
        e("s_barrier")
    e("s_add_u32 s20, s20, 2")
    e(f"s_cmp_lt_u32 s20, {nch}")
    e(f"s_cbranch_scc1 {P}kloop")
    e("s_waitcnt lgkmcnt(0)")

def gen_t2(name, P, kind):
    e = E()
    header(e, name)
    e("s_cmp_ge_u32 s2, 256")
    e(f"s_cbranch_scc1 {P}end")
    if kind == 'wo':
        e("s_load_dwordx2 s[24:25], s[0:1], 16")
        e("s_load_dwordx2 s[26:27], s[0:1], 0")
        e("s_load_dwordx2 s[28:29], s[0:1], 80")
    else:
        e("s_load_dwordx4 s[24:27], s[0:1], 48")
        e("s_load_dwordx2 s[28:29], s[0:1], 80")
        e("s_load_dwordx2 s[30:31], s[0:1], 64")
    e("v_lshrrev_b32 v2, 6, v0")
    e("s_and_b32 s3, s2, 7")
    e("s_lshr_b32 s4, s2, 3")
    e("v_readfirstlane_b32 s6, v2")
    e("s_lshl_b32 s5, s3, 2")
    e("s_and_b32 s9, s4, 3")
    e("s_add_u32 s48, s5, s9")
    e("s_lshr_b32 s49, s4, 2")
    e("s_waitcnt lgkmcnt(0)")
    srd(e, 12, 28, 29, WS_SIZE)
    if kind == 'wo':
        srd(e, 16, 24, 25, 512*512*2)
        srd(e, 32, 26, 27, 2048*512*2)
        srd(e, 36, 28, 29, WS_SIZE)
        xstride, nch = 1024, 8
    else:
        srd(e, 16, 24, 25, 1792*512*2)
        srd(e, 32, 26, 27, 512*2)
        srd(e, 36, 30, 31, 2048*512*2)
        xstride, nch = 3584, 28
    e("s_cmp_ge_u32 s6, 4")
    e(f"s_cbranch_scc0 {P}comp")
    e(f"s_mul_i32 s40, s48, {64*xstride}")
    e(f"s_add_u32 s40, s40, {(WS_O if kind=='wo' else WS_F):#x}")
    e("s_lshl_b32 s41, s49, 7")
    t2_loader(e, P, xstride, 1024, nch)
    e.label(P+"comp")
    e("s_lshr_b32 s7, s6, 1")
    e("s_and_b32 s8, s6, 1")
    e("v_and_b32 v3, 63, v0")
    e("v_and_b32 v4, 31, v3")
    e("v_lshrrev_b32 v5, 5, v3")
    e("v_lshlrev_b32 v1, 10, v4")
    e("v_lshl_add_u32 v1, v5, 5, v1")
    e("s_lshl_b32 s9, s48, 16")
    e("s_lshl_b32 s10, s7, 15")
    e("s_add_u32 s50, s9, s10")
    e("s_lshl_b32 s9, s49, 7")
    e("s_lshl_b32 s10, s8, 6")
    e("s_add_u32 s51, s9, s10")
    e("s_add_u32 s50, s50, s51")
    if kind == 'wo':
        e("buffer_load_dwordx4 v[144:147], v1, s[32:35], s50 offen")
        e("buffer_load_dwordx4 v[148:151], v1, s[32:35], s50 offen offset:16")
    else:
        e(f"s_add_u32 s52, s50, {WS_H:#x}")
        e("buffer_load_dwordx4 v[144:147], v1, s[12:15], s52 offen")
        e("buffer_load_dwordx4 v[148:151], v1, s[12:15], s52 offen offset:16")
        e("v_lshlrev_b32 v2, 5, v5")
        e("buffer_load_dwordx4 v[152:155], v2, s[32:35], s51 offen")
        e("buffer_load_dwordx4 v[156:159], v2, s[32:35], s51 offen offset:16")
    t2_compute(e, P, nch)
    e("s_waitcnt vmcnt(0)")
    e("s_nop 4")
    for i in range(8):
        e(f"v_lshlrev_b32 v16, 16, v{144+i}")
        e(f"v_and_b32 v17, 0xffff0000, v{144+i}")
        e(f"v_pk_add_f32 {vr(64+2*i,2)}, {vr(64+2*i,2)}, v[16:17]")
        if kind != 'wo':
            e(f"v_lshlrev_b32 v18, 16, v{152+i}")
            e(f"v_and_b32 v19, 0xffff0000, v{152+i}")
            e(f"v_pk_add_f32 {vr(64+2*i,2)}, {vr(64+2*i,2)}, v[18:19]")
    for p in range(8):
        e(f"v_cvt_pk_bf16_f32 v{64+p}, v{64+2*p}, v{64+2*p+1}")
    if kind == 'wo':
        e(f"s_add_u32 s52, s50, {WS_H:#x}")
        e("buffer_store_dwordx4 v[64:67], v1, s[36:39], s52 offen")
        e("buffer_store_dwordx4 v[68:71], v1, s[36:39], s52 offen offset:16")
    else:
        e("buffer_store_dwordx4 v[64:67], v1, s[36:39], s50 offen")
        e("buffer_store_dwordx4 v[68:71], v1, s[36:39], s50 offen offset:16")
    e.label(P+"end")
    e("s_endpgm")
    return e.text() + desc(name, 160, 64), T2_LDS

HEADER = """; Kernarg layout for this problem (88 bytes, ptrs only, base s[0:1]):
;   offset  16: d_in[2] A_wo  shape=(512, 512) dtype=bfloat16 strides=(1024, 2) contiguous=True
;   offset  80: d_ws      268435456 bytes workspace
"""

def build(kernels=None):
    ks = [
        ("qkv_kernel", gen_qkv, 192, 512),
        ("attn_kernel", gen_attn, 256, 512),
        ("wo_kernel", lambda n: gen_t2(n, "wo_", 'wo'), 256, 512),
        ("ffn1_kernel", gen_ffn1, 224, 512),
        ("ffn2_kernel", lambda n: gen_t2(n, "f2_", 'ffn2'), 256, 512),
    ]
    head = HEADER
    body = ""
    for name, fn, grid, blk in ks:
        t, lds = fn(name)
        head += f"; @launch kernel={name} grid=({grid},1,1) block=({blk},1,1) lds={lds}\n"
        body += t
    return head + '.amdgcn_target "amdgcn-amd-amdhsa--gfx950"\n.text\n' + body

if __name__ == "__main__":
    out = sys.argv[1] if len(sys.argv) > 1 else f"cdna_kernels/{NAME}.s"
    t = build()
    open(out, "w").write(t)
    from lint import lint
    r = lint(t)
    for x in r: print(x)
    print(len(r), "hazards;", len(t), "bytes")
```

```python
import sys, struct

NAME = "sequential_preLN__softmax_full_mha__dense_activation_gelu__prompt"

WS_Q = 0x000000
WS_K = 0x200000
WS_V = 0x400000
WS_O = 0x600000
WS_H = 0x800000
WS_F = 0xA00000
WS_SIZE = 0x10000000

def f2u(x):
    return struct.unpack('<I', struct.pack('<f', x))[0]

class E:
    def __init__(self):
        self.l = []
    def __call__(self, s):
        self.l.append("    " + s)
    def label(self, s):
        self.l.append(s + ":")
    def c(self, s):
        self.l.append("    ; " + s)
    def text(self):
        return "\n".join(self.l) + "\n"

def vr(a, n=1):
    return f"v{a}" if n == 1 else f"v[{a}:{a+n-1}]"
def sr(a, n=1):
    return f"s{a}" if n == 1 else f"s[{a}:{a+n-1}]"

def srd(e, d, lo, hi, size):
    e(f"s_mov_b32 s{d}, s{lo}")
    e(f"s_mov_b32 s{d+1}, s{hi}")
    e(f"s_mov_b32 s{d+2}, {size:#x}")
    e(f"s_mov_b32 s{d+3}, 0x00020000")

INSTR = False
WS_TS = 0x2000000
KIDX = {"qkv_kernel":0, "attn_kernel":1, "wo_kernel":2, "ffn1_kernel":3, "ffn2_kernel":4}
def ts_start(e):
    if INSTR or DBGTS:
        e("s_memrealtime s[90:91]")
        e("s_memtime s[94:95]")
def mark(e, i):
    if not INSTR: return
    e(f"s_memtime s[{70+2*i}:{71+2*i}]")
def ts_end(e, name, tag):
    if not INSTR: return
    e("s_waitcnt vmcnt(0)")
    e("s_memrealtime s[92:93]")
    e("s_memtime s[82:83]")
    e("s_load_dwordx2 s[80:81], s[0:1], 80")
    e("v_lshrrev_b32 v250, 6, v0")
    e("s_waitcnt lgkmcnt(0)")
    e("s_mov_b32 s84, s80")
    e("s_mov_b32 s85, s81")
    e(f"s_mov_b32 s86, {WS_SIZE:#x}")
    e("s_mov_b32 s87, 0x00020000")
    e("s_lshl_b32 s88, s2, 3")
    e("v_add_u32 v250, s88, v250")
    e("v_lshlrev_b32 v250, 5, v250")
    e(f"v_add_u32 v250, {WS_TS + KIDX[name]*131072:#x}, v250")
    e("s_sub_u32 s82, s82, s94")
    e("v_mov_b32 v252, s90")
    e("v_mov_b32 v253, s92")
    e("v_mov_b32 v254, s82")
    e("s_sub_u32 s70, s70, s94")
    e("s_sub_u32 s72, s72, s94")
    e("s_sub_u32 s74, s74, s94")
    e("s_sub_u32 s76, s76, s94")
    e("s_getreg_b32 s78, hwreg(HW_REG_HW_ID)")
    e("v_mov_b32 v255, s70")
    e("v_mov_b32 v244, s72")
    e("v_mov_b32 v245, s74")
    e("v_mov_b32 v246, s76")
    e("v_mov_b32 v247, s78")
    e("buffer_store_dwordx4 v[252:255], v250, s[84:87], 0 offen")
    e("buffer_store_dwordx4 v[244:247], v250, s[84:87], 0 offen offset:16")

def header(e, name):
    e.name = name
    e.l.append(f".globl {name}")
    e.l.append(".p2align 8")
    e.l.append(f".type {name},@function")
    e.label(name)
    ts_start(e)

DBGTS = False
def dbg_ts(e):
    k = KIDX[e.name]
    e("s_waitcnt vmcnt(0)")
    e("s_memrealtime s[92:93]")
    e("s_memtime s[82:83]")
    e("s_load_dwordx2 s[80:81], s[0:1], 72")
    e("s_waitcnt lgkmcnt(0)")
    e(f"s_add_u32 s80, s80, {(4-k)*512}")
    e("s_addc_u32 s81, s81, 0")
    e("s_mov_b32 s84, s80")
    e("s_mov_b32 s85, s81")
    e("s_mov_b32 s86, 256")
    e("s_mov_b32 s87, 0x00020000")
    e("s_not_b32 s90, s90")
    e("s_sub_u32 s82, s82, s94")
    e("v_mov_b32 v252, s92")
    e("v_mov_b32 v253, s90")
    e("v_mov_b32 v254, s82")
    e(f"v_mov_b32 v250, {8*k}")
    e(f"v_mov_b32 v251, {40+4*k}")
    e("v_cmp_eq_u32 vcc, 0, v255")
    e("s_and_saveexec_b64 s[88:89], vcc")
    e("buffer_atomic_umax v252, v250, s[84:87], 0 offen")
    e("buffer_atomic_umax v253, v250, s[84:87], 0 offen offset:4")
    e("buffer_atomic_umax v254, v251, s[84:87], 0 offen")
def endp(e):
    if DBGTS:
        e("v_and_b32 v255, 63, v0")
        dbg_ts(e)
    else:
        ts_end(e, e.name, 0)
    e("s_endpgm")

def desc(name, vgpr, sgpr=96):
    if INSTR or DBGTS: vgpr, sgpr = 256, 96
    acc = (vgpr + 3) // 4 * 4
    return f""".section .rodata,"a"
.p2align 6
.amdhsa_kernel {name}
  .amdhsa_next_free_vgpr {vgpr}
  .amdhsa_next_free_sgpr {sgpr}
  .amdhsa_accum_offset {acc}
  .amdhsa_group_segment_fixed_size 0
  .amdhsa_kernarg_size 88
  .amdhsa_user_sgpr_count 2
  .amdhsa_user_sgpr_kernarg_segment_ptr 1
  .amdhsa_system_sgpr_workgroup_id_x 1
.end_amdhsa_kernel
.text
"""

ATT_LDS = 131072 + 8192
ATT_NA = 4

def gen_attn(name):
    e = E()
    header(e, name)
    P = "at_"
    vQ, vC, vS0, vS1, vO, vP = 4, 16, 32, 48, 64, 80
    kf = [88, 92]
    vf = [96, 104]
    e("s_cmp_ge_u32 s2, 256")
    e(f"s_cbranch_scc1 {P}end")
    e("s_load_dwordx2 s[4:5], s[0:1], 80")
    e("v_lshrrev_b32 v2, 6, v0")
    e("v_and_b32 v3, 63, v0")
    e("v_lshlrev_b32 v1, 4, v3")
    e("v_readfirstlane_b32 s6, v2")
    e("s_and_b32 s7, s2, 7")
    e("s_lshr_b32 s8, s2, 3")
    e("s_lshr_b32 s9, s8, 3")
    e("s_lshl_b32 s7, s7, 2")
    e("s_add_u32 s7, s7, s9")
    e("s_and_b32 s8, s8, 7")
    e("s_lshl_b32 s9, s8, 3")
    e("s_add_u32 s9, s9, s6")
    e("s_lshl_b32 s16, s7, 16")
    e("s_lshl_b32 s17, s9, 10")
    e("s_add_u32 s17, s17, s16")
    e("s_lshl_b32 s18, s6, 10")
    e("s_add_u32 s18, s18, s16")
    e(f"s_add_u32 s19, s18, {WS_V:#x}")
    e(f"s_add_u32 s18, s18, {WS_K:#x}")
    e("s_lshl_b32 s20, s6, 11")
    e("s_mov_b32 s21, 8")
    e("s_waitcnt lgkmcnt(0)")
    srd(e, 12, 4, 5, WS_SIZE)
    e(f"buffer_load_dwordx4 {vr(vQ,4)}, v1, s[12:15], s17 offen")
    e.label(P+"dma")
    e("s_mov_b32 m0, s20")
    e("s_add_u32 s20, s20, 1024")
    e("buffer_load_dwordx4 v1, s[12:15], s18 offen lds")
    e("s_mov_b32 m0, s20")
    e("s_add_u32 s18, s18, 8192")
    e("buffer_load_dwordx4 v1, s[12:15], s19 offen lds")
    e(f"s_add_u32 s20, s20, {16384-1024}")
    e("s_add_u32 s19, s19, 8192")
    e("s_sub_u32 s21, s21, 1")
    e("s_cmp_lg_u32 s21, 0")
    e(f"s_cbranch_scc1 {P}dma")
    e("s_mov_b32 s22, 0x0000ffff")
    e("s_mov_b32 s23, 0x0000ffff")
    e("v_mov_b32 v2, 0x3f803f80")
    for i in range(16):
        e(f"v_mov_b32 v{vf[0]+i}, v2")
    for i in range(16):
        e(f"v_mov_b32 v{vC+i}, 0")
    e(f"s_mov_b32 s24, {ATT_NA}")
    e("s_mov_b32 s25, 0")
    e("v_and_b32 v8, 31, v3")
    e("v_lshrrev_b32 v9, 5, v3")
    e("v_lshlrev_b32 v8, 10, v8")
    e("v_lshl_add_u32 v8, v9, 4, v8")
    e("s_lshl_b32 s26, s9, 15")
    e("s_lshl_b32 s27, s7, 5")
    e("s_add_u32 s26, s26, s27")
    e(f"s_add_u32 s26, s26, {WS_O:#x}")
    nfirst = 1 + (ATT_NA*2 + 2 + 7)//8
    nfirst = min(8, (ATT_NA*2 + 2 + 7)//8)
    mark(e, 0)
    e(f"s_waitcnt vmcnt({16 - 2*nfirst})")
    e("s_barrier")
    mark(e, 1)
    e.label(P+"run")
    for i in range(16):
        e(f"v_mov_b32 v{vO+i}, 0")
    e("v_lshlrev_b32 v1, 4, v3")
    e(f"ds_read_b128 {vr(kf[0],4)}, v1")
    e(f"ds_read_b128 {vr(kf[1],4)}, v1 offset:2048")
    e("s_mov_b64 exec, s[22:23]")
    e(f"ds_read_b128 {vr(vf[0],4)}, v1 offset:1024")
    e(f"ds_read_b128 {vr(vf[0]+4,4)}, v1 offset:1280")
    e("s_mov_b64 exec, -1")
    e("s_mov_b32 s21, 0")
    e("s_waitcnt lgkmcnt(3)")
    e(f"v_mfma_f32_32x32x16_bf16 {vr(vS0,16)}, {vr(kf[0],4)}, {vr(vQ,4)}, {vr(vC,16)}")
    for i in range(4, 8):
        e(f"v_mov_b32 v{vP+i}, 0")
    e("s_nop 7")
    e.label(P+"loop")
    def tile(Sc, Sn, kuse, kload, vprev, vuse, vload, koff, voff):
        e("s_waitcnt lgkmcnt(2)")
        e(f"v_mfma_f32_32x32x16_bf16 {vr(Sn,16)}, {vr(kuse,4)}, {vr(vQ,4)}, {vr(vC,16)}")
        e(f"v_mfma_f32_32x32x16_bf16 {vr(vO,16)}, {vr(vprev+4,4)}, {vr(vP+4,4)}, {vr(vO,16)}")
        e(f"ds_read_b128 {vr(kload,4)}, v1 offset:{koff}")
        e("s_mov_b64 exec, s[22:23]")
        e(f"ds_read_b128 {vr(vload,4)}, v1 offset:{voff}")
        e(f"ds_read_b128 {vr(vload+4,4)}, v1 offset:{voff+256}")
        e("s_mov_b64 exec, -1")
        X = lambda i: e(f"v_exp_f32 v{Sc+i}, v{Sc+i}")
        Cv = lambda p: e(f"v_cvt_pk_bf16_f32 v{vP+p}, v{Sc+2*p}, v{Sc+2*p+1}")
        X(0); X(1); X(2); X(3); Cv(0); X(4); X(5); Cv(1); X(6); X(7); Cv(2); X(8); Cv(3); X(9)
        e("s_waitcnt lgkmcnt(3)")
        e(f"v_mfma_f32_32x32x16_bf16 {vr(vO,16)}, {vr(vuse,4)}, {vr(vP,4)}, {vr(vO,16)}")
        X(10); X(11); Cv(4); X(12); X(13); Cv(5); X(14); X(15); Cv(6)
        e("s_nop 0") if False else None
        Cv(7)
    tile(vS0, vS1, kf[1], kf[0], vf[1], vf[0], vf[1], 4096, 2048+1024)
    tile(vS1, vS0, kf[0], kf[1], vf[0], vf[1], vf[0], 6144, 4096+1024)
    e("v_add_u32 v1, 4096, v1")
    e("s_add_u32 s21, s21, 1")
    e("s_cmp_lg_u32 s21, s24")
    e(f"s_cbranch_scc1 {P}nobar")
    mark(e, 2)
    e("s_waitcnt vmcnt(0)")
    e("s_barrier")
    mark(e, 3)
    e.label(P+"nobar")
    e("s_cmp_lt_u32 s21, 32")
    e(f"s_cbranch_scc1 {P}loop")
    mark(e, 4)
    e("s_nop 0")
    e(f"v_mfma_f32_32x32x16_bf16 {vr(vO,16)}, {vr(vf[1]+4,4)}, {vr(vP+4,4)}, {vr(vO,16)}")
    e("s_waitcnt lgkmcnt(0)")
    e("s_nop 7")
    e("s_nop 3")
    e("s_cmp_lg_u32 s25, 0")
    e(f"s_cbranch_scc1 {P}fin")
    e(f"v_mul_f32 v10, 0, v{vO}")
    for i in range(1, 8):
        e(f"v_fmac_f32 v10, 0, v{vO+i}")
    e(f"s_mov_b32 s28, {f2u(2.0**-100):#x}")
    e(f"s_mov_b32 s29, {f2u(2.0**100):#x}")
    e(f"v_cmp_le_f32 s[30:31], s28, v{vO+8}")
    e(f"v_cmp_ge_f32 s[32:33], s29, v{vO+8}")
    e("v_cmp_eq_f32 vcc, 0, v10")
    e("s_nop 1")
    e("s_and_b64 s[30:31], s[30:31], s[32:33]")
    e("s_and_b64 s[30:31], s[30:31], vcc")
    e("s_cmp_eq_u64 s[30:31], -1")
    e(f"s_cbranch_scc1 {P}fin")
    e("s_mov_b32 s25, 1")
    e("s_mov_b32 s24, -1")
    e("v_lshlrev_b32 v1, 4, v3")
    e("v_mov_b32 v10, 0xff800000")
    e("s_mov_b32 s21, 0")
    e.label(P+"mx")
    e(f"ds_read_b128 {vr(kf[0],4)}, v1")
    e("s_waitcnt lgkmcnt(0)")
    e(f"v_mfma_f32_32x32x16_bf16 {vr(vS0,16)}, {vr(kf[0],4)}, {vr(vQ,4)}, 0")
    e("v_add_u32 v1, 2048, v1")
    e("s_nop 7")
    e("s_nop 3")
    for i in range(0, 16, 2):
        e(f"v_max3_f32 v10, v10, v{vS0+i}, v{vS0+i+1}")
    e("s_add_u32 s21, s21, 1")
    e("s_cmp_lt_u32 s21, 64")
    e(f"s_cbranch_scc1 {P}mx")
    e("v_mov_b32 v11, v10")
    e("s_nop 1")
    e("v_permlane32_swap_b32 v10, v11")
    e("s_nop 1")
    e("v_max_f32 v10, v10, v11")
    e("v_sub_f32 v10, 0, v10")
    for i in range(16):
        e(f"v_mov_b32 v{vC+i}, v10")
    e(f"s_branch {P}run")
    e.label(P+"fin")
    e(f"v_rcp_f32 v10, v{vO+8}")
    e("s_nop 0")
    for i in range(8):
        e(f"v_mul_f32 v{vO+i}, v{vO+i}, v10")
    for i in range(4):
        e(f"v_cvt_pk_bf16_f32 v{12+i}, v{vO+2*i}, v{vO+2*i+1}")
    e("buffer_store_dwordx4 v[12:15], v8, s[12:15], s26 offen")
    endp(e)
    e.label(P+"end")
    e("s_endpgm")
    return e.text() + desc(name, 112, 48), ATT_LDS

T1_S = 5
T1_SLOT = 32768
T1_LDS = T1_S * T1_SLOT

def t1_loader(e, P, wstride, nch=8):
    S = T1_S
    e("s_sub_u32 s7, s6, 4")
    e("v_and_b32 v3, 63, v0")
    e("v_lshrrev_b32 v4, 3, v3")
    e("s_lshl_b32 s8, s7, 3")
    e("v_add_u32 v4, s8, v4")
    e("v_lshlrev_b32 v4, 10, v4")
    e("v_lshrrev_b32 v5, 4, v3")
    e("s_and_b32 s8, s7, 1")
    e("s_lshl_b32 s8, s8, 2")
    e("v_add_u32 v6, s8, v5")
    e("v_and_b32 v7, 7, v3")
    e("v_xor_b32 v6, v6, v7")
    e("v_lshl_add_u32 v1, v6, 4, v4")
    e("s_lshl_b32 s8, s7, 2")
    e("v_add_u32 v4, s8, v5")
    e(f"s_mov_b32 s9, {wstride}")
    e("v_mul_lo_u32 v4, v4, s9")
    e("v_bfe_u32 v6, v3, 2, 2")
    e("v_xor_b32 v6, v6, v5")
    e("v_and_b32 v7, 3, v3")
    e("v_lshl_add_u32 v6, v6, 2, v7")
    e("v_lshl_add_u32 v2, v6, 4, v4")
    e("s_lshl_b32 s42, s7, 10")
    e("s_mov_b32 s43, 0")
    def issue():
        e("s_add_u32 s44, s42, s43")
        e("s_mov_b32 s45, s40")
        e("s_mov_b32 s46, s41")
        for i in range(4):
            e("s_mov_b32 m0, s44")
            e("s_add_u32 s44, s44, 4096")
            e("buffer_load_dwordx4 v1, s[12:15], s45 offen lds")
            if i < 3: e("s_add_u32 s45, s45, 32768")
        for i in range(4):
            e("s_mov_b32 m0, s44")
            e("s_add_u32 s44, s44, 4096")
            e("buffer_load_dwordx4 v2, s[16:19], s46 offen lds")
            if i < 3: e(f"s_add_u32 s46, s46, {16*wstride}")
        e("s_add_u32 s40, s40, 128")
        e(f"s_add_u32 s41, s41, {64*wstride}")
        e(f"s_add_u32 s43, s43, {T1_SLOT}")
        e(f"s_cmp_eq_u32 s43, {S*T1_SLOT}")
        e("s_cselect_b32 s43, 0, s43")
    e(f"s_mov_b32 s47, {S}")
    e.label(P+"ld0")
    issue()
    e("s_sub_u32 s47, s47, 1")
    e("s_cmp_lg_u32 s47, 0")
    e(f"s_cbranch_scc1 {P}ld0")
    def allowed(c):
        issued = min(nch, S + max(0, c-1))
        return max(0, issued - (c+2)) * 8
    e(f"s_waitcnt vmcnt({allowed(0)})")
    e("s_barrier")
    nsteady = nch - S
    al = [allowed(c) for c in range(1, nsteady+1)]
    assert len(set(al)) <= 1 or True
    e(f"s_mov_b32 s47, {nsteady}")
    e.label(P+"ld1")
    e(f"s_waitcnt vmcnt({min(al)})")
    e("s_barrier")
    issue()
    e("s_sub_u32 s47, s47, 1")
    e("s_cmp_lg_u32 s47, 0")
    e(f"s_cbranch_scc1 {P}ld1")
    for c in range(nsteady+1, nch+1):
        e(f"s_waitcnt vmcnt({allowed(c)})")
        e("s_barrier")
    e("s_endpgm")

def t1_compute_addr(e, mode):
    e("s_lshr_b32 s7, s6, 1")
    e("s_and_b32 s8, s6, 1")
    e("v_and_b32 v3, 63, v0")
    e("v_and_b32 v4, 31, v3")
    e("v_lshrrev_b32 v5, 5, v3")
    e("v_bfe_u32 v6, v3, 1, 3")
    e("v_xor_b32 v6, v6, v5")
    e("v_lshlrev_b32 v6, 4, v6")
    e("s_lshl_b32 s9, s7, 6")
    e("s_lshl_b32 s10, s8, 5")
    e("s_add_u32 s9, s9, s10")
    e("v_add_u32 v7, s9, v4")
    e("v_lshlrev_b32 v7, 7, v7")
    for s in range(4):
        e(f"v_xor_b32 v{8+s}, {s<<5}, v6")
        e(f"v_add_u32 v{8+s}, v{8+s}, v7")
        e(f"v_xor_b32 v{12+s}, 4096, v{8+s}")
    e("v_lshrrev_b32 v6, 4, v3")
    e("v_bfe_u32 v7, v3, 2, 2")
    e("v_and_b32 v18, 3, v3")
    e("v_and_b32 v19, 1, v6")
    e("v_lshl_add_u32 v18, v19, 2, v18")
    if mode == 'generic':
        e("v_and_b32 v19, 1, v18")
        e("v_lshlrev_b32 v19, 2, v19")
        e("v_lshrrev_b32 v18, 1, v18")
        e("v_or_b32 v18, v18, v19")
    else:
        e("v_and_b32 v19, 1, v18")
        e("v_lshlrev_b32 v19, 1, v19")
        e("v_bfe_u32 v20, v18, 1, 1")
        e("v_and_b32 v18, 4, v18")
        e("v_or3_b32 v18, v18, v19, v20")
    e("v_lshrrev_b32 v6, 1, v6")
    e("v_lshl_add_u32 v6, v6, 3, v7")
    e("v_lshlrev_b32 v6, 8, v6")
    e("s_lshl_b32 s9, s8, 1")
    e("s_add_u32 s9, s9, s7")
    e("v_xor_b32 v7, s9, v7")
    e("v_lshlrev_b32 v7, 6, v7")
    e("v_add3_u32 v16, v6, v7, 0")
    e("v_lshl_add_u32 v16, v18, 3, v16")
    e("v_add_u32 v16, 16384, v16")
    e("v_xor_b32 v17, 64, v16")

XF = [[32, 36], [48, 52]]
WF = [[40, 44], [56, 60]]
ACC = 64
def t1_reads(e, buf, s):
    e(f"ds_read_b128 {vr(XF[buf][0],4)}, v{8+s}")
    e(f"ds_read_b128 {vr(XF[buf][1],4)}, v{12+s}")
    for k in range(2):
        e(f"ds_read_b64_tr_b16 {vr(WF[buf][k],2)}, v{16+k} offset:{s*4096}")
        e(f"ds_read_b64_tr_b16 {vr(WF[buf][k]+2,2)}, v{16+k} offset:{s*4096+1024}")

def t1_mainloop(e, P, vmode):
    S = T1_S
    mark(e, 0)
    e("s_barrier")
    mark(e, 1)
    t1_reads(e, 0, 0)
    e("s_mov_b32 s20, 0")
    e("s_mov_b32 s21, 0")
    e.label(P+"kloop")
    e(f"s_add_u32 s22, s21, {T1_SLOT}")
    e(f"s_cmp_eq_u32 s22, {S*T1_SLOT}")
    e("s_cselect_b32 s22, 0, s22")
    e("s_sub_u32 s23, s22, s21")
    e("s_mov_b32 s21, s22")
    for s in range(4):
        buf = s & 1
        nb = buf ^ 1
        ns = (s + 1) & 3
        t1_reads(e, nb, ns)
        adv = []
        if s < 3:
            adv += [8+ns, 12+ns] if ns != 0 else []
        if s == 2:
            adv += [8, 12, 16, 17]
        e("s_waitcnt lgkmcnt(6)")
        dots = []
        for i in range(4):
            dots.append(f"v_dot2c_f32_bf16 v{22+(i&1)}, v{XF[buf][0]+i}, v21")
            dots.append(f"v_dot2c_f32_bf16 v{24+(i&1)}, v{XF[buf][0]+i}, v{XF[buf][0]+i}")
            dots.append(f"v_dot2c_f32_bf16 v{26+(i&1)}, v{WF[buf][0]+i}, v21")
        fill = dots + [f"v_add_u32 v{a}, s23, v{a}" for a in adv]
        per = (len(fill) + 3) // 4
        idx = 0
        for k in range(2):
            for kp in range(2):
                a = ACC + 16*(2*k + kp)
                if vmode:
                    e(f"v_mfma_f32_32x32x16_bf16 {vr(a,16)}, {vr(XF[buf][kp],4)}, {vr(WF[buf][k],4)}, {vr(a,16)}")
                else:
                    e(f"v_mfma_f32_32x32x16_bf16 {vr(a,16)}, {vr(WF[buf][k],4)}, {vr(XF[buf][kp],4)}, {vr(a,16)}")
                for t in fill[idx:idx+per]: e(t)
                idx += per
    e("s_barrier")
    e("s_add_u32 s20, s20, 1")
    e("s_cmp_lt_u32 s20, 8")
    e(f"s_cbranch_scc1 {P}kloop")
    mark(e, 2)
    e("s_waitcnt lgkmcnt(0)")

def t1_stats(e, scale_sreg):
    e("s_nop 2")
    e("v_add_f32 v22, v22, v23")
    e("v_add_f32 v24, v24, v25")
    e("v_add_f32 v26, v26, v27")
    e("v_mov_b32 v23, v22")
    e("v_mov_b32 v25, v24")
    e("v_mov_b32 v27, v26")
    e("s_nop 1")
    e("v_permlane32_swap_b32 v22, v23")
    e("v_permlane32_swap_b32 v24, v25")
    e("v_permlane32_swap_b32 v26, v27")
    e("s_nop 1")
    e("v_add_f32 v22, v22, v23")
    e("v_add_f32 v24, v24, v25")
    e("v_add_f32 v26, v26, v27")
    e(f"v_mul_f32 v22, {f2u(1.0/512):#x}, v22")
    e(f"v_mul_f32 v24, {f2u(1.0/512):#x}, v24")
    e("v_fma_f32 v24, -v22, v22, v24")
    e("v_max_f32 v24, 0, v24")
    e(f"v_add_f32 v24, {f2u(1e-5):#x}, v24")
    e("v_rsq_f32 v24, v24")
    e("s_nop 0")
    e(f"v_mul_f32 v24, s{scale_sreg}, v24")
    e("v_mul_f32 v22, v22, v24")
    e("v_sub_f32 v22, 0, v22")
    e("s_lshl_b32 s9, s7, 6")
    e("s_lshl_b32 s10, s8, 5")
    e("s_add_u32 s9, s9, s10")
    e("v_add_u32 v28, s9, v4")
    e("v_lshlrev_b32 v28, 2, v28")
    e("ds_write_b32 v28, v24")
    e("ds_write_b32 v28, v22 offset:512")

def t1_cs_write(e, mode):
    e("v_lshrrev_b32 v29, 2, v4")
    if mode == 'generic':
        e("v_and_b32 v30, 1, v29")
        e("v_lshlrev_b32 v30, 2, v30")
        e("v_lshrrev_b32 v29, 1, v29")
        e("v_or_b32 v29, v29, v30")
    else:
        e("v_and_b32 v30, 1, v29")
        e("v_lshlrev_b32 v30, 1, v30")
        e("v_bfe_u32 v31, v29, 1, 1")
        e("v_and_b32 v29, 4, v29")
        e("v_or3_b32 v29, v29, v30, v31")
    e("v_and_b32 v30, 3, v4")
    e("v_lshl_add_u32 v29, v29, 2, v30")
    e("s_lshl_b32 s9, s8, 6")
    e("s_lshl_b32 s10, s7, 5")
    e("s_add_u32 s9, s9, s10")
    e("v_add_u32 v30, s9, v29")
    e("v_lshlrev_b32 v30, 2, v30")
    e("ds_write_b32 v30, v26 offset:1024")
    e("s_waitcnt lgkmcnt(0)")
    e("s_barrier")
    mark(e, 3)

def t1_init(e):
    e("v_mov_b32 v21, 0x3f803f80")
    for i in range(22, 28): e(f"v_mov_b32 v{i}, 0")
    for i in range(64): e(f"v_mov_b32 v{ACC+i}, 0")


def sadd(e, d, a, b):
    e(f"s_add_u32 s{d}, s{a}, {b}")

def tile_bases(e):
    for k in range(2):
        e(f"s_xor_b32 s9, s7, {k}")
        e("s_lshl_b32 s9, s9, 5")
        e("s_lshl_b32 s10, s8, 6")
        e(f"s_add_u32 s{50+k}, s9, s10")
    for kp in range(2):
        e(f"s_xor_b32 s9, s8, {kp}")
        e("s_lshl_b32 s9, s9, 5")
        e("s_lshl_b32 s10, s7, 6")
        e(f"s_add_u32 s{52+kp}, s9, s10")

def read_tok_stats(e):
    for kp in range(2):
        e(f"v_add_u32 v28, s{52+kp}, v4")
        e("v_lshlrev_b32 v28, 2, v28")
        e(f"ds_read2st64_b32 {vr(8+2*kp,2)}, v28 offset0:0 offset1:2")

def gen_qkv(name):
    e = E(); P = "q_"
    header(e, name)
    e("s_cmp_ge_u32 s2, 192")
    e(f"s_cbranch_scc1 {P}end")
    e("s_load_dwordx4 s[24:27], s[0:1], 0")
    e("s_load_dwordx2 s[28:29], s[0:1], 80")
    e("v_lshrrev_b32 v2, 6, v0")
    e("s_and_b32 s3, s2, 7")
    e("s_lshr_b32 s4, s2, 3")
    e("v_readfirstlane_b32 s6, v2")
    e("s_and_b32 s5, s3, 3")
    e("s_lshl_b32 s5, s5, 2")
    e("s_and_b32 s9, s4, 3")
    e("s_add_u32 s30, s5, s9")
    e("s_lshr_b32 s5, s3, 2")
    e("s_mul_i32 s5, s5, 6")
    e("s_lshr_b32 s9, s4, 2")
    e("s_add_u32 s31, s5, s9")
    e("s_waitcnt lgkmcnt(0)")
    srd(e, 12, 24, 25, 2048*512*2)
    srd(e, 16, 26, 27, 512*1536*2)
    srd(e, 32, 28, 29, WS_SIZE)
    e("s_cmp_ge_u32 s6, 4")
    e(f"s_cbranch_scc0 {P}comp")
    e("s_lshl_b32 s40, s30, 17")
    e("s_lshl_b32 s41, s31, 8")
    t1_loader(e, P, 3072)
    e.label(P+"comp")
    t1_compute_addr(e, 'qk')
    t1_init(e)
    tile_bases(e)
    e("s_cmp_ge_u32 s31, 8")
    e(f"s_cbranch_scc1 {P}vpath")
    t1_mainloop(e, P+"a", False)
    e(f"s_mov_b32 s36, {f2u(0.25*1.4426950408889634):#x}")
    e("s_cmp_lt_u32 s31, 4")
    e("s_cselect_b32 s36, s36, 1.0")
    t1_stats(e, 36)
    t1_cs_write(e, 'qk')
    read_tok_stats(e)
    for k in range(2):
        e(f"v_lshl_add_u32 v28, v5, 3, s{50+k}")
        e("v_lshlrev_b32 v28, 2, v28")
        for q, off in enumerate((0, 16, 64, 80)):
            e(f"ds_read_b128 {vr(32+16*k+4*q,4)}, v28 offset:{1024+off}")
    e("s_and_b32 s9, s31, 3")
    e("s_lshl_b32 s9, s9, 19")
    e("s_cmp_lt_u32 s31, 4")
    e(f"s_cselect_b32 s10, {WS_Q:#x}, {WS_K:#x}")
    e("s_add_u32 s37, s9, s10")
    e("s_lshl_b32 s9, s30, 12")
    e("s_add_u32 s37, s37, s9")
    e("v_lshlrev_b32 v1, 4, v3")
    e("s_waitcnt lgkmcnt(0)")
    for k in range(2):
        for kp in range(2):
            a = ACC + 16*(2*k+kp)
            st = 8 + 2*kp
            for p in range(8):
                tmp = 16 + 2*(p & 1)
                e(f"v_pk_mul_f32 {vr(tmp,2)}, {vr(32+16*k+2*p,2)}, {vr(st,2)} op_sel:[0,1] op_sel_hi:[1,1]")
                e(f"v_pk_fma_f32 {vr(a+2*p,2)}, {vr(a+2*p,2)}, {vr(st,2)}, {vr(tmp,2)} op_sel_hi:[1,0,1]")
            for p in range(8):
                e(f"v_cvt_pk_bf16_f32 v{a+p}, v{a+2*p}, v{a+2*p+1}")
            e(f"s_lshl_b32 s9, s{50+k}, 12")
            e(f"s_lshl_b32 s10, s{52+kp}, 5")
            e("s_add_u32 s9, s9, s10")
            e("s_add_u32 s9, s9, s37")
            e("s_add_u32 s10, s9, 65536")
            e(f"buffer_store_dwordx4 {vr(a,4)}, v1, s[32:35], s9 offen")
            e(f"buffer_store_dwordx4 {vr(a+4,4)}, v1, s[32:35], s10 offen")
    endp(e)
    e.label(P+"vpath")
    t1_mainloop(e, P+"b", True)
    e("s_mov_b32 s36, 1.0")
    t1_stats(e, 36)
    t1_cs_write(e, 'qk')
    for k in range(2):
        e(f"v_add_u32 v28, s{50+k}, v29")
        e("v_lshlrev_b32 v28, 2, v28")
        e(f"ds_read_b32 v{8+2*k}, v28 offset:1024")
    for kp in range(2):
        e(f"v_lshl_add_u32 v28, v5, 2, s{52+kp}")
        e("v_lshlrev_b32 v28, 2, v28")
        for g in range(4):
            e(f"ds_read_b128 {vr(128+32*kp+4*g,4)}, v28 offset:{32*g}")
            e(f"ds_read_b128 {vr(144+32*kp+4*g,4)}, v28 offset:{512+32*g}")
        e("s_waitcnt lgkmcnt(0)")
    e("v_lshrrev_b32 v1, 4, v4")
    e("v_lshlrev_b32 v1, 16, v1")
    e("v_lshl_add_u32 v1, v5, 9, v1")
    e("v_and_b32 v2, 15, v4")
    e("v_lshl_add_u32 v1, v2, 4, v1")
    e("s_and_b32 s9, s31, 3")
    e("s_lshl_b32 s9, s9, 19")
    e(f"s_add_u32 s37, s9, {WS_V:#x}")
    e("s_lshl_b32 s9, s30, 12")
    e("s_add_u32 s37, s37, s9")
    for k in range(2):
        for kp in range(2):
            a = ACC + 16*(2*k+kp)
            for p in range(8):
                tmp = 16 + 2*(p & 1)
                e(f"v_pk_mul_f32 {vr(tmp,2)}, {vr(144+32*kp+2*p,2)}, {vr(8+2*k,2)} op_sel_hi:[1,0]")
                e(f"v_pk_fma_f32 {vr(a+2*p,2)}, {vr(a+2*p,2)}, {vr(128+32*kp+2*p,2)}, {vr(tmp,2)}")
            for p in range(8):
                e(f"v_cvt_pk_bf16_f32 v{a+p}, v{a+2*p}, v{a+2*p+1}")
            e(f"s_lshl_b32 s9, s{50+k}, 12")
            e(f"s_lshl_b32 s10, s{52+kp}, 5")
            e("s_add_u32 s9, s9, s10")
            e("s_add_u32 s9, s9, s37")
            e(f"buffer_store_dwordx4 {vr(a,4)}, v1, s[32:35], s9 offen")
            e(f"buffer_store_dwordx4 {vr(a+4,4)}, v1, s[32:35], s9 offen offset:256")
    endp(e)
    e.label(P+"end")
    e("s_endpgm")
    return e.text() + desc(name, 192, 64), T1_LDS

def gen_ffn1(name):
    e = E(); P = "f1_"
    header(e, name)
    e("s_cmp_ge_u32 s2, 224")
    e(f"s_cbranch_scc1 {P}end")
    e("s_load_dwordx4 s[24:27], s[0:1], 32")
    e("s_load_dwordx2 s[28:29], s[0:1], 80")
    e("v_lshrrev_b32 v2, 6, v0")
    e("s_and_b32 s3, s2, 7")
    e("s_lshr_b32 s4, s2, 3")
    e("v_readfirstlane_b32 s6, v2")
    e("s_lshl_b32 s5, s3, 1")
    e("s_and_b32 s9, s4, 1")
    e("s_add_u32 s30, s5, s9")
    e("s_lshr_b32 s31, s4, 1")
    e("s_waitcnt lgkmcnt(0)")
    srd(e, 32, 28, 29, WS_SIZE)
    srd(e, 12, 28, 29, WS_SIZE)
    srd(e, 16, 24, 25, 512*1792*2)
    srd(e, 36, 26, 27, 1792*2)
    e("s_cmp_ge_u32 s6, 4")
    e(f"s_cbranch_scc0 {P}comp")
    e("s_lshl_b32 s40, s30, 17")
    e(f"s_add_u32 s40, s40, {WS_H:#x}")
    e("s_lshl_b32 s41, s31, 8")
    t1_loader(e, P, 3584)
    e.label(P+"comp")
    t1_compute_addr(e, 'generic')
    t1_init(e)
    tile_bases(e)
    e("v_lshlrev_b32 v1, 5, v5")
    for k in range(2):
        e("s_lshl_b32 s9, s31, 7")
        e(f"s_add_u32 s9, s9, s{50+k}")
        e("s_lshl_b32 s9, s9, 1")
        e(f"buffer_load_dwordx4 {vr(128+8*k,4)}, v1, s[36:39], s9 offen")
        e(f"buffer_load_dwordx4 {vr(132+8*k,4)}, v1, s[36:39], s9 offen offset:16")
    t1_mainloop(e, P, False)
    e("s_mov_b32 s48, 1.0")
    t1_stats(e, 48)
    t1_cs_write(e, 'generic')
    read_tok_stats(e)
    for k in range(2):
        e(f"v_lshl_add_u32 v28, v5, 4, s{50+k}")
        e("v_lshlrev_b32 v28, 2, v28")
        for q in range(4):
            e(f"ds_read_b128 {vr(32+16*k+4*q,4)}, v28 offset:{1024+16*q}")
    e("s_waitcnt vmcnt(0)")
    for k in range(2):
        for i in range(8):
            e(f"v_lshlrev_b32 v{144+16*k+2*i}, 16, v{128+8*k+i}")
            e(f"v_and_b32 v{144+16*k+2*i+1}, 0xffff0000, v{128+8*k+i}")
    GA = -2.0*0.7978845608028654*1.4426950408889634
    GB = GA*0.044715
    e(f"v_mov_b32 v12, {f2u(GA):#x}")
    e(f"v_mov_b32 v13, {f2u(GB):#x}")
    e("s_movk_i32 s9, 3584")
    e("v_mul_lo_u32 v1, v4, s9")
    e("v_lshl_add_u32 v1, v5, 5, v1")
    e("s_lshl_b32 s9, s30, 7")
    e("s_mul_i32 s49, s9, 3584")
    e("s_lshl_b32 s9, s31, 8")
    e("s_add_u32 s49, s49, s9")
    e(f"s_add_u32 s49, s49, {WS_F:#x}")
    e("s_waitcnt lgkmcnt(0)")
    for k in range(2):
        for kp in range(2):
            a = ACC + 16*(2*k+kp)
            st = 8 + 2*kp
            for p0 in range(0, 8, 2):
                T = [(p0, 16, 20), (p0+1, 18, 22)]
                for p, ta, tb in T:
                    e(f"v_pk_fma_f32 {vr(ta,2)}, {vr(32+16*k+2*p,2)}, {vr(st,2)}, {vr(144+16*k+2*p,2)} op_sel:[0,1,0] op_sel_hi:[1,1,1]")
                for p, ta, tb in T:
                    e(f"v_pk_fma_f32 {vr(a+2*p,2)}, {vr(a+2*p,2)}, {vr(st,2)}, {vr(ta,2)} op_sel_hi:[1,0,1]")
                for p, ta, tb in T:
                    e(f"v_pk_mul_f32 {vr(ta,2)}, {vr(a+2*p,2)}, {vr(a+2*p,2)}")
                for p, ta, tb in T:
                    e(f"v_pk_fma_f32 {vr(ta,2)}, {vr(ta,2)}, v[12:13], v[12:13] op_sel:[0,1,0] op_sel_hi:[1,1,0]")
                for p, ta, tb in T:
                    e(f"v_pk_mul_f32 {vr(ta,2)}, {vr(ta,2)}, {vr(a+2*p,2)}")
                for p, ta, tb in T:
                    e(f"v_exp_f32 v{ta}, v{ta}")
                    e(f"v_exp_f32 v{ta+1}, v{ta+1}")
                for p, ta, tb in T:
                    e(f"v_pk_add_f32 {vr(ta,2)}, {vr(ta,2)}, 1.0 op_sel_hi:[1,0]")
                for p, ta, tb in T:
                    e(f"v_rcp_f32 v{ta}, v{ta}")
                    e(f"v_rcp_f32 v{ta+1}, v{ta+1}")
                for p, ta, tb in T:
                    e(f"v_pk_mul_f32 {vr(a+2*p,2)}, {vr(a+2*p,2)}, {vr(ta,2)}")
            for p in range(8):
                e(f"v_cvt_pk_bf16_f32 v{a+p}, v{a+2*p}, v{a+2*p+1}")
            e(f"s_mul_i32 s9, s{52+kp}, 3584")
            e(f"s_lshl_b32 s10, s{50+k}, 1")
            e("s_add_u32 s9, s9, s10")
            e("s_add_u32 s9, s9, s49")
            e(f"buffer_store_dwordx4 {vr(a,4)}, v1, s[32:35], s9 offen")
            e(f"buffer_store_dwordx4 {vr(a+4,4)}, v1, s[32:35], s9 offen offset:16")
    endp(e)
    e.label(P+"end")
    e("s_endpgm")
    return e.text() + desc(name, 192, 64), T1_LDS

T2_S = 8
T2_SLOT = 16384
T2_LDS = T2_S * T2_SLOT

def t2_loader(e, P, xstride, wstride, nch):
    S = T2_S
    e("s_sub_u32 s7, s6, 4")
    e("v_and_b32 v3, 63, v0")
    e("v_lshrrev_b32 v4, 3, v3")
    e("s_lshl_b32 s8, s7, 3")
    e("v_add_u32 v4, s8, v4")
    e(f"s_mov_b32 s9, {xstride}")
    e("v_mul_lo_u32 v8, v4, s9")
    e("v_lshrrev_b32 v5, 4, v3")
    e("s_and_b32 s8, s7, 1")
    e("s_lshl_b32 s8, s8, 2")
    e("v_add_u32 v6, s8, v5")
    e("v_and_b32 v7, 7, v3")
    e("v_xor_b32 v6, v6, v7")
    e("v_lshl_add_u32 v1, v6, 4, v8")
    e(f"s_mov_b32 s9, {wstride}")
    e("v_mul_lo_u32 v8, v4, s9")
    e("v_bfe_u32 v6, v3, 2, 1")
    e("v_and_b32 v5, 1, v5")
    e("v_xor_b32 v6, v6, v5")
    e("v_and_b32 v7, 3, v3")
    e("v_lshl_add_u32 v6, v6, 2, v7")
    e("v_lshl_add_u32 v2, v6, 4, v8")
    e("s_lshl_b32 s42, s7, 10")
    e("s_mov_b32 s43, 0")
    def issue():
        e("s_add_u32 s44, s42, s43")
        e(f"s_add_u32 s45, s40, {32*xstride}")
        e(f"s_add_u32 s46, s41, {32*wstride}")
        e("s_mov_b32 m0, s44")
        e("s_add_u32 s44, s44, 4096")
        e("buffer_load_dwordx4 v1, s[12:15], s40 offen lds")
        e("s_mov_b32 m0, s44")
        e("s_add_u32 s44, s44, 4096")
        e("buffer_load_dwordx4 v1, s[12:15], s45 offen lds")
        e("s_mov_b32 m0, s44")
        e("s_add_u32 s44, s44, 4096")
        e("buffer_load_dwordx4 v2, s[16:19], s41 offen lds")
        e("s_mov_b32 m0, s44")
        e("s_add_u32 s40, s40, 128")
        e("buffer_load_dwordx4 v2, s[16:19], s46 offen lds")
        e(f"s_add_u32 s41, s41, {64*wstride}")
        e(f"s_add_u32 s43, s43, {T2_SLOT}")
        e(f"s_and_b32 s43, s43, {S*T2_SLOT-1}")
    n0 = min(S, nch)
    e(f"s_mov_b32 s47, {n0}")
    e.label(P+"ld0")
    issue()
    e("s_sub_u32 s47, s47, 1")
    e("s_cmp_lg_u32 s47, 0")
    e(f"s_cbranch_scc1 {P}ld0")
    def allowed(c):
        issued = min(nch, S + max(0, c-1))
        return max(0, issued - (c+2)) * 4
    e(f"s_waitcnt vmcnt({allowed(0)})")
    e("s_barrier")
    nsteady = max(0, nch - S)
    if nsteady:
        al = [allowed(c) for c in range(1, nsteady+1)]
        e(f"s_mov_b32 s47, {nsteady}")
        e.label(P+"ld1")
        e(f"s_waitcnt vmcnt({min(al)})")
        e("s_barrier")
        issue()
        e("s_sub_u32 s47, s47, 1")
        e("s_cmp_lg_u32 s47, 0")
        e(f"s_cbranch_scc1 {P}ld1")
    for c in range(nsteady+1, nch+1):
        e(f"s_waitcnt vmcnt({allowed(c)})")
        e("s_barrier")
    e("s_endpgm")

def t2_compute(e, P, nch):
    S = T2_S
    e("v_bfe_u32 v6, v3, 1, 3")
    e("v_xor_b32 v6, v6, v5")
    e("v_lshlrev_b32 v6, 4, v6")
    e("s_lshl_b32 s9, s7, 5")
    e("v_add_u32 v7, s9, v4")
    e("v_lshlrev_b32 v7, 7, v7")
    for s in range(4):
        e(f"v_xor_b32 v{8+s}, {s<<5}, v6")
        e(f"v_add_u32 v{8+s}, v{8+s}, v7")
    e("v_lshrrev_b32 v6, 4, v3")
    e("v_bfe_u32 v7, v3, 2, 2")
    e("v_and_b32 v18, 3, v3")
    e("v_and_b32 v19, 1, v6")
    e("v_lshl_add_u32 v18, v19, 2, v18")
    e("v_and_b32 v19, 1, v18")
    e("v_lshlrev_b32 v19, 2, v19")
    e("v_lshrrev_b32 v18, 1, v18")
    e("v_or_b32 v18, v18, v19")
    e("v_lshrrev_b32 v6, 1, v6")
    e("v_lshl_add_u32 v6, v6, 3, v7")
    e("v_lshlrev_b32 v6, 7, v6")
    e("v_lshrrev_b32 v7, 1, v7")
    e("v_xor_b32 v7, s8, v7")
    e("v_lshlrev_b32 v7, 6, v7")
    e("v_add_u32 v12, v6, v7")
    e("v_lshl_add_u32 v12, v18, 3, v12")
    e("v_add_u32 v12, 8192, v12")
    for i in range(16): e(f"v_mov_b32 v{64+i}, 0")
    XB = [80, 112]
    def reads(buf):
        b = XB[buf]
        for s in range(4):
            e(f"ds_read_b128 {vr(b+8*s,4)}, v{8+s}")
            e(f"ds_read_b64_tr_b16 {vr(b+8*s+4,2)}, v12 offset:{s*2048}")
            e(f"ds_read_b64_tr_b16 {vr(b+8*s+6,2)}, v12 offset:{s*2048+512}")
    def advance():
        e(f"s_add_u32 s22, s21, {T2_SLOT}")
        e(f"s_and_b32 s22, s22, {S*T2_SLOT-1}")
        e("s_sub_u32 s23, s22, s21")
        e("s_mov_b32 s21, s22")
        for a in (8, 9, 10, 11, 12):
            e(f"v_add_u32 v{a}, s23, v{a}")
    e("s_mov_b32 s21, 0")
    e("s_mov_b32 s20, 0")
    mark(e, 0)
    e("s_barrier")
    mark(e, 1)
    reads(0)
    e.label(P+"kloop")
    for half in range(2):
        buf = half
        advance()
        reads(buf ^ 1)
        e("s_waitcnt lgkmcnt(12)")
        b = XB[buf]
        for s in range(4):
            e(f"v_mfma_f32_32x32x16_bf16 v[64:79], {vr(b+8*s+4,4)}, {vr(b+8*s,4)}, v[64:79]")
        e("s_barrier")
    e("s_add_u32 s20, s20, 2")
    e(f"s_cmp_lt_u32 s20, {nch}")
    e(f"s_cbranch_scc1 {P}kloop")
    mark(e, 2)
    e("s_waitcnt lgkmcnt(0)")

def gen_t2(name, P, kind):
    e = E()
    header(e, name)
    e("s_cmp_ge_u32 s2, 256")
    e(f"s_cbranch_scc1 {P}end")
    if kind == 'wo':
        e("s_load_dwordx2 s[24:25], s[0:1], 16")
        e("s_load_dwordx2 s[26:27], s[0:1], 0")
        e("s_load_dwordx2 s[28:29], s[0:1], 80")
    else:
        e("s_load_dwordx4 s[24:27], s[0:1], 48")
        e("s_load_dwordx2 s[28:29], s[0:1], 80")
        e("s_load_dwordx2 s[30:31], s[0:1], 64")
    e("v_lshrrev_b32 v2, 6, v0")
    e("s_and_b32 s3, s2, 7")
    e("s_lshr_b32 s4, s2, 3")
    e("v_readfirstlane_b32 s6, v2")
    e("s_lshl_b32 s5, s3, 2")
    e("s_and_b32 s9, s4, 3")
    e("s_add_u32 s48, s5, s9")
    e("s_lshr_b32 s49, s4, 2")
    e("s_waitcnt lgkmcnt(0)")
    srd(e, 12, 28, 29, WS_SIZE)
    if kind == 'wo':
        srd(e, 16, 24, 25, 512*512*2)
        srd(e, 32, 26, 27, 2048*512*2)
        srd(e, 36, 28, 29, WS_SIZE)
        xstride, nch = 1024, 8
    else:
        srd(e, 16, 24, 25, 1792*512*2)
        srd(e, 32, 26, 27, 512*2)
        srd(e, 36, 30, 31, 2048*512*2)
        xstride, nch = 3584, 28
    e("s_cmp_ge_u32 s6, 4")
    e(f"s_cbranch_scc0 {P}comp")
    e(f"s_mul_i32 s40, s48, {64*xstride}")
    e(f"s_add_u32 s40, s40, {(WS_O if kind=='wo' else WS_F):#x}")
    e("s_lshl_b32 s41, s49, 7")
    t2_loader(e, P, xstride, 1024, nch)
    e.label(P+"comp")
    e("s_lshr_b32 s7, s6, 1")
    e("s_and_b32 s8, s6, 1")
    e("v_and_b32 v3, 63, v0")
    e("v_and_b32 v4, 31, v3")
    e("v_lshrrev_b32 v5, 5, v3")
    e("v_lshlrev_b32 v1, 10, v4")
    e("v_lshl_add_u32 v1, v5, 5, v1")
    e("s_lshl_b32 s9, s48, 16")
    e("s_lshl_b32 s10, s7, 15")
    e("s_add_u32 s50, s9, s10")
    e("s_lshl_b32 s9, s49, 7")
    e("s_lshl_b32 s10, s8, 6")
    e("s_add_u32 s51, s9, s10")
    e("s_add_u32 s50, s50, s51")
    if kind == 'wo':
        e("buffer_load_dwordx4 v[144:147], v1, s[32:35], s50 offen")
        e("buffer_load_dwordx4 v[148:151], v1, s[32:35], s50 offen offset:16")
    else:
        e(f"s_add_u32 s52, s50, {WS_H:#x}")
        e("buffer_load_dwordx4 v[144:147], v1, s[12:15], s52 offen")
        e("buffer_load_dwordx4 v[148:151], v1, s[12:15], s52 offen offset:16")
        e("v_lshlrev_b32 v2, 5, v5")
        e("buffer_load_dwordx4 v[152:155], v2, s[32:35], s51 offen")
        e("buffer_load_dwordx4 v[156:159], v2, s[32:35], s51 offen offset:16")
    t2_compute(e, P, nch)
    e("s_waitcnt vmcnt(0)")
    e("s_nop 4")
    for i in range(8):
        e(f"v_lshlrev_b32 v16, 16, v{144+i}")
        e(f"v_and_b32 v17, 0xffff0000, v{144+i}")
        e(f"v_pk_add_f32 {vr(64+2*i,2)}, {vr(64+2*i,2)}, v[16:17]")
        if kind != 'wo':
            e(f"v_lshlrev_b32 v18, 16, v{152+i}")
            e(f"v_and_b32 v19, 0xffff0000, v{152+i}")
            e(f"v_pk_add_f32 {vr(64+2*i,2)}, {vr(64+2*i,2)}, v[18:19]")
    for p in range(8):
        e(f"v_cvt_pk_bf16_f32 v{64+p}, v{64+2*p}, v{64+2*p+1}")
    if kind == 'wo':
        e(f"s_add_u32 s52, s50, {WS_H:#x}")
        e("buffer_store_dwordx4 v[64:67], v1, s[36:39], s52 offen")
        e("buffer_store_dwordx4 v[68:71], v1, s[36:39], s52 offen offset:16")
    else:
        e("buffer_store_dwordx4 v[64:67], v1, s[36:39], s50 offen")
        e("buffer_store_dwordx4 v[68:71], v1, s[36:39], s50 offen offset:16")
    endp(e)
    e.label(P+"end")
    e("s_endpgm")
    return e.text() + desc(name, 160, 64), T2_LDS

HEADER = """; Kernarg layout for this problem (88 bytes, ptrs only, base s[0:1]):
;   offset  16: d_in[2] A_wo  shape=(512, 512) dtype=bfloat16 strides=(1024, 2) contiguous=True
;   offset  80: d_ws      268435456 bytes workspace
"""

def build(kernels=None):
    ks = [
        ("qkv_kernel", gen_qkv, 192, 512),
        ("attn_kernel", gen_attn, 256, 512),
        ("wo_kernel", lambda n: gen_t2(n, "wo_", 'wo'), 256, 512),
        ("ffn1_kernel", gen_ffn1, 224, 512),
        ("ffn2_kernel", lambda n: gen_t2(n, "f2_", 'ffn2'), 256, 512),
    ]
    head = HEADER
    body = ""
    for name, fn, grid, blk in ks:
        t, lds = fn(name)
        head += f"; @launch kernel={name} grid=({grid},1,1) block=({blk},1,1) lds={lds}\n"
        body += t
    return head + '.amdgcn_target "amdgcn-amd-amdhsa--gfx950"\n.text\n' + body

if __name__ == "__main__":
    if "--dbgts" in sys.argv:
        DBGTS = True
        sys.argv.remove("--dbgts")
    if "--instr" in sys.argv:
        INSTR = True
        sys.argv.remove("--instr")
    out = sys.argv[1] if len(sys.argv) > 1 else f"cdna_kernels/{NAME}.s"
    t = build()
    open(out, "w").write(t)
    from lint import lint
    r = lint(t)
    for x in r: print(x)
    print(len(r), "hazards;", len(t), "bytes")
```

```python
import sys, struct

NAME = "sequential_preLN__softmax_full_mha__dense_activation_gelu__prompt"

WS_Q = 0x000000
WS_K = 0x200000
WS_V = 0x400000
WS_O = 0x600000
WS_H = 0x800000
WS_F = 0xA00000
WS_SIZE = 0x10000000

def f2u(x):
    return struct.unpack('<I', struct.pack('<f', x))[0]

class E:
    def __init__(self):
        self.l = []
    def __call__(self, s):
        self.l.append("    " + s)
    def label(self, s):
        self.l.append(s + ":")
    def c(self, s):
        self.l.append("    ; " + s)
    def text(self):
        return "\n".join(self.l) + "\n"

def vr(a, n=1):
    return f"v{a}" if n == 1 else f"v[{a}:{a+n-1}]"
def sr(a, n=1):
    return f"s{a}" if n == 1 else f"s[{a}:{a+n-1}]"

def srd(e, d, lo, hi, size):
    e(f"s_mov_b32 s{d}, s{lo}")
    e(f"s_mov_b32 s{d+1}, s{hi}")
    e(f"s_mov_b32 s{d+2}, {size:#x}")
    e(f"s_mov_b32 s{d+3}, 0x00020000")

INSTR = False
WS_TS = 0x2000000
KIDX = {"qkv_kernel":0, "attn_kernel":1, "wo_kernel":2, "ffn1_kernel":3, "ffn2_kernel":4}
def ts_start(e):
    if INSTR or DBGTS:
        e("s_memrealtime s[90:91]")
        e("s_memtime s[94:95]")
def mark(e, i):
    if not INSTR: return
    e(f"s_memtime s[{70+2*i}:{71+2*i}]")
def ts_end(e, name, tag):
    if not INSTR: return
    e("s_waitcnt vmcnt(0)")
    e("s_memrealtime s[92:93]")
    e("s_memtime s[82:83]")
    e("s_load_dwordx2 s[80:81], s[0:1], 80")
    e("v_lshrrev_b32 v250, 6, v0")
    e("s_waitcnt lgkmcnt(0)")
    e("s_mov_b32 s84, s80")
    e("s_mov_b32 s85, s81")
    e(f"s_mov_b32 s86, {WS_SIZE:#x}")
    e("s_mov_b32 s87, 0x00020000")
    e("s_lshl_b32 s88, s2, 3")
    e("v_add_u32 v250, s88, v250")
    e("v_lshlrev_b32 v250, 5, v250")
    e(f"v_add_u32 v250, {WS_TS + KIDX[name]*131072:#x}, v250")
    e("s_sub_u32 s82, s82, s94")
    e("v_mov_b32 v252, s90")
    e("v_mov_b32 v253, s92")
    e("v_mov_b32 v254, s82")
    e("s_sub_u32 s70, s70, s94")
    e("s_sub_u32 s72, s72, s94")
    e("s_sub_u32 s74, s74, s94")
    e("s_sub_u32 s76, s76, s94")
    e("s_getreg_b32 s78, hwreg(HW_REG_HW_ID)")
    e("v_mov_b32 v255, s70")
    e("v_mov_b32 v244, s72")
    e("v_mov_b32 v245, s74")
    e("v_mov_b32 v246, s76")
    e("v_mov_b32 v247, s78")
    e("buffer_store_dwordx4 v[252:255], v250, s[84:87], 0 offen")
    e("buffer_store_dwordx4 v[244:247], v250, s[84:87], 0 offen offset:16")

def header(e, name):
    e.name = name
    e.l.append(f".globl {name}")
    e.l.append(".p2align 8")
    e.l.append(f".type {name},@function")
    e.label(name)
    ts_start(e)

DBGTS = False
def dbg_ts(e):
    k = KIDX[e.name]
    e("s_and_b32 s92, s2, 31")
    e("s_cmp_lg_u32 s92, 0")
    e(f"s_cbranch_scc1 dbgskip{len(e.l)}")
    lab = f"dbgskip{len(e.l)-1}"
    e.dbglab = lab
    e("s_waitcnt vmcnt(0)")
    e("s_memrealtime s[92:93]")
    e("s_memtime s[82:83]")
    e("s_load_dwordx2 s[80:81], s[0:1], 72")
    e("s_waitcnt lgkmcnt(0)")
    e(f"s_add_u32 s80, s80, {(4-k)*512}")
    e("s_addc_u32 s81, s81, 0")
    e("s_mov_b32 s84, s80")
    e("s_mov_b32 s85, s81")
    e("s_mov_b32 s86, 256")
    e("s_mov_b32 s87, 0x00020000")
    e("s_not_b32 s90, s90")
    e("s_sub_u32 s82, s82, s94")
    e("v_mov_b32 v252, s92")
    e("v_mov_b32 v253, s90")
    e("v_mov_b32 v254, s82")
    e(f"v_mov_b32 v250, {8*k}")
    e(f"v_mov_b32 v251, {40+4*k}")
    e("v_cmp_eq_u32 vcc, 0, v255")
    e("s_and_saveexec_b64 s[88:89], vcc")
    e("buffer_atomic_umax v252, v250, s[84:87], 0 offen")
    e("buffer_atomic_umax v253, v250, s[84:87], 0 offen offset:4")
    e("buffer_atomic_umax v254, v251, s[84:87], 0 offen")
    e.label(e.dbglab)
def endp(e):
    if DBGTS:
        e("v_and_b32 v255, 63, v0")
        dbg_ts(e)
    else:
        ts_end(e, e.name, 0)
    e("s_endpgm")

def desc(name, vgpr, sgpr=96):
    if INSTR or DBGTS: vgpr, sgpr = 256, 96
    acc = (vgpr + 3) // 4 * 4
    return f""".section .rodata,"a"
.p2align 6
.amdhsa_kernel {name}
  .amdhsa_next_free_vgpr {vgpr}
  .amdhsa_next_free_sgpr {sgpr}
  .amdhsa_accum_offset {acc}
  .amdhsa_group_segment_fixed_size 0
  .amdhsa_kernarg_size 88
  .amdhsa_user_sgpr_count 2
  .amdhsa_user_sgpr_kernarg_segment_ptr 1
  .amdhsa_system_sgpr_workgroup_id_x 1
.end_amdhsa_kernel
.text
"""

ATT_LDS = 131072 + 8192
ATT_NA = 4

def gen_attn(name):
    e = E()
    header(e, name)
    P = "at_"
    vQ, vC, vS0, vS1, vO, vP = 4, 16, 32, 48, 64, 80
    kf = [88, 92]
    vf = [96, 104]
    e("s_cmp_ge_u32 s2, 256")
    e(f"s_cbranch_scc1 {P}end")
    e("s_load_dwordx2 s[4:5], s[0:1], 80")
    e("v_lshrrev_b32 v2, 6, v0")
    e("v_and_b32 v3, 63, v0")
    e("v_lshlrev_b32 v1, 4, v3")
    e("v_readfirstlane_b32 s6, v2")
    e("s_and_b32 s7, s2, 7")
    e("s_lshr_b32 s8, s2, 3")
    e("s_lshr_b32 s9, s8, 3")
    e("s_lshl_b32 s7, s7, 2")
    e("s_add_u32 s7, s7, s9")
    e("s_and_b32 s8, s8, 7")
    e("s_lshl_b32 s9, s8, 3")
    e("s_add_u32 s9, s9, s6")
    e("s_lshl_b32 s16, s7, 16")
    e("s_lshl_b32 s17, s9, 10")
    e("s_add_u32 s17, s17, s16")
    e("s_lshl_b32 s18, s6, 10")
    e("s_add_u32 s18, s18, s16")
    e(f"s_add_u32 s19, s18, {WS_V:#x}")
    e(f"s_add_u32 s18, s18, {WS_K:#x}")
    e("s_lshl_b32 s20, s6, 11")
    e("s_mov_b32 s21, 8")
    e("s_waitcnt lgkmcnt(0)")
    srd(e, 12, 4, 5, WS_SIZE)
    e(f"buffer_load_dwordx4 {vr(vQ,4)}, v1, s[12:15], s17 offen")
    e.label(P+"dma")
    e("s_mov_b32 m0, s20")
    e("s_add_u32 s20, s20, 1024")
    e("buffer_load_dwordx4 v1, s[12:15], s18 offen lds")
    e("s_mov_b32 m0, s20")
    e("s_add_u32 s18, s18, 8192")
    e("buffer_load_dwordx4 v1, s[12:15], s19 offen lds")
    e(f"s_add_u32 s20, s20, {16384-1024}")
    e("s_add_u32 s19, s19, 8192")
    e("s_sub_u32 s21, s21, 1")
    e("s_cmp_lg_u32 s21, 0")
    e(f"s_cbranch_scc1 {P}dma")
    e("s_mov_b32 s22, 0x0000ffff")
    e("s_mov_b32 s23, 0x0000ffff")
    e("v_mov_b32 v2, 0x3f803f80")
    for i in range(16):
        e(f"v_mov_b32 v{vf[0]+i}, v2")
    for i in range(16):
        e(f"v_mov_b32 v{vC+i}, 0")
    e(f"s_mov_b32 s24, {ATT_NA}")
    e("s_mov_b32 s25, 0")
    e("v_and_b32 v8, 31, v3")
    e("v_lshrrev_b32 v9, 5, v3")
    e("v_lshlrev_b32 v8, 10, v8")
    e("v_lshl_add_u32 v8, v9, 4, v8")
    e("s_lshl_b32 s26, s9, 15")
    e("s_lshl_b32 s27, s7, 5")
    e("s_add_u32 s26, s26, s27")
    e(f"s_add_u32 s26, s26, {WS_O:#x}")
    nfirst = 1 + (ATT_NA*2 + 2 + 7)//8
    nfirst = min(8, (ATT_NA*2 + 2 + 7)//8)
    mark(e, 0)
    e(f"s_waitcnt vmcnt({16 - 2*nfirst})")
    e("s_barrier")
    mark(e, 1)
    e.label(P+"run")
    for i in range(16):
        e(f"v_mov_b32 v{vO+i}, 0")
    e("v_lshlrev_b32 v1, 4, v3")
    e(f"ds_read_b128 {vr(kf[0],4)}, v1")
    e(f"ds_read_b128 {vr(kf[1],4)}, v1 offset:2048")
    e("s_mov_b64 exec, s[22:23]")
    e(f"ds_read_b128 {vr(vf[0],4)}, v1 offset:1024")
    e(f"ds_read_b128 {vr(vf[0]+4,4)}, v1 offset:1280")
    e("s_mov_b64 exec, -1")
    e("s_mov_b32 s21, 0")
    e("s_waitcnt lgkmcnt(3)")
    e(f"v_mfma_f32_32x32x16_bf16 {vr(vS0,16)}, {vr(kf[0],4)}, {vr(vQ,4)}, {vr(vC,16)}")
    for i in range(4, 8):
        e(f"v_mov_b32 v{vP+i}, 0")
    e("s_nop 7")
    e.label(P+"loop")
    def tile(Sc, Sn, kuse, kload, vprev, vuse, vload, koff, voff):
        e("s_waitcnt lgkmcnt(2)")
        e(f"v_mfma_f32_32x32x16_bf16 {vr(Sn,16)}, {vr(kuse,4)}, {vr(vQ,4)}, {vr(vC,16)}")
        e(f"v_mfma_f32_32x32x16_bf16 {vr(vO,16)}, {vr(vprev+4,4)}, {vr(vP+4,4)}, {vr(vO,16)}")
        e(f"ds_read_b128 {vr(kload,4)}, v1 offset:{koff}")
        e("s_mov_b64 exec, s[22:23]")
        e(f"ds_read_b128 {vr(vload,4)}, v1 offset:{voff}")
        e(f"ds_read_b128 {vr(vload+4,4)}, v1 offset:{voff+256}")
        e("s_mov_b64 exec, -1")
        X = lambda i: e(f"v_exp_f32 v{Sc+i}, v{Sc+i}")
        Cv = lambda p: e(f"v_cvt_pk_bf16_f32 v{vP+p}, v{Sc+2*p}, v{Sc+2*p+1}")
        X(0); X(1); X(2); X(3); Cv(0); X(4); X(5); Cv(1); X(6); X(7); Cv(2); X(8); Cv(3); X(9)
        e("s_waitcnt lgkmcnt(3)")
        e(f"v_mfma_f32_32x32x16_bf16 {vr(vO,16)}, {vr(vuse,4)}, {vr(vP,4)}, {vr(vO,16)}")
        X(10); X(11); Cv(4); X(12); X(13); Cv(5); X(14); X(15); Cv(6)
        e("s_nop 0") if False else None
        Cv(7)
    tile(vS0, vS1, kf[1], kf[0], vf[1], vf[0], vf[1], 4096, 2048+1024)
    tile(vS1, vS0, kf[0], kf[1], vf[0], vf[1], vf[0], 6144, 4096+1024)
    e("v_add_u32 v1, 4096, v1")
    e("s_add_u32 s21, s21, 1")
    e("s_cmp_lg_u32 s21, s24")
    e(f"s_cbranch_scc1 {P}nobar")
    mark(e, 2)
    e("s_waitcnt vmcnt(0)")
    e("s_barrier")
    mark(e, 3)
    e.label(P+"nobar")
    e("s_cmp_lt_u32 s21, 32")
    e(f"s_cbranch_scc1 {P}loop")
    mark(e, 4)
    e("s_nop 0")
    e(f"v_mfma_f32_32x32x16_bf16 {vr(vO,16)}, {vr(vf[1]+4,4)}, {vr(vP+4,4)}, {vr(vO,16)}")
    e("s_waitcnt lgkmcnt(0)")
    e("s_nop 7")
    e("s_nop 3")
    e("s_cmp_lg_u32 s25, 0")
    e(f"s_cbranch_scc1 {P}fin")
    e(f"v_mul_f32 v10, 0, v{vO}")
    for i in range(1, 8):
        e(f"v_fmac_f32 v10, 0, v{vO+i}")
    e(f"s_mov_b32 s28, {f2u(2.0**-100):#x}")
    e(f"s_mov_b32 s29, {f2u(2.0**100):#x}")
    e(f"v_cmp_le_f32 s[30:31], s28, v{vO+8}")
    e(f"v_cmp_ge_f32 s[32:33], s29, v{vO+8}")
    e("v_cmp_eq_f32 vcc, 0, v10")
    e("s_nop 1")
    e("s_and_b64 s[30:31], s[30:31], s[32:33]")
    e("s_and_b64 s[30:31], s[30:31], vcc")
    e("s_cmp_eq_u64 s[30:31], -1")
    e(f"s_cbranch_scc1 {P}fin")
    e("s_mov_b32 s25, 1")
    e("s_mov_b32 s24, -1")
    e("v_lshlrev_b32 v1, 4, v3")
    e("v_mov_b32 v10, 0xff800000")
    e("s_mov_b32 s21, 0")
    e.label(P+"mx")
    e(f"ds_read_b128 {vr(kf[0],4)}, v1")
    e("s_waitcnt lgkmcnt(0)")
    e(f"v_mfma_f32_32x32x16_bf16 {vr(vS0,16)}, {vr(kf[0],4)}, {vr(vQ,4)}, 0")
    e("v_add_u32 v1, 2048, v1")
    e("s_nop 7")
    e("s_nop 3")
    for i in range(0, 16, 2):
        e(f"v_max3_f32 v10, v10, v{vS0+i}, v{vS0+i+1}")
    e("s_add_u32 s21, s21, 1")
    e("s_cmp_lt_u32 s21, 64")
    e(f"s_cbranch_scc1 {P}mx")
    e("v_mov_b32 v11, v10")
    e("s_nop 1")
    e("v_permlane32_swap_b32 v10, v11")
    e("s_nop 1")
    e("v_max_f32 v10, v10, v11")
    e("v_sub_f32 v10, 0, v10")
    for i in range(16):
        e(f"v_mov_b32 v{vC+i}, v10")
    e(f"s_branch {P}run")
    e.label(P+"fin")
    e(f"v_rcp_f32 v10, v{vO+8}")
    e("s_nop 0")
    for i in range(8):
        e(f"v_mul_f32 v{vO+i}, v{vO+i}, v10")
    for i in range(4):
        e(f"v_cvt_pk_bf16_f32 v{12+i}, v{vO+2*i}, v{vO+2*i+1}")
    e("buffer_store_dwordx4 v[12:15], v8, s[12:15], s26 offen")
    endp(e)
    e.label(P+"end")
    e("s_endpgm")
    return e.text() + desc(name, 112, 48), ATT_LDS

T1_S = 5
T1_SLOT = 32768
T1_LDS = T1_S * T1_SLOT

def t1_loader(e, P, wstride, nch=8):
    S = T1_S
    e("s_sub_u32 s7, s6, 4")
    e("v_and_b32 v3, 63, v0")
    e("v_lshrrev_b32 v4, 3, v3")
    e("s_lshl_b32 s8, s7, 3")
    e("v_add_u32 v4, s8, v4")
    e("v_lshlrev_b32 v4, 10, v4")
    e("v_lshrrev_b32 v5, 4, v3")
    e("s_and_b32 s8, s7, 1")
    e("s_lshl_b32 s8, s8, 2")
    e("v_add_u32 v6, s8, v5")
    e("v_and_b32 v7, 7, v3")
    e("v_xor_b32 v6, v6, v7")
    e("v_lshl_add_u32 v1, v6, 4, v4")
    e("s_lshl_b32 s8, s7, 2")
    e("v_add_u32 v4, s8, v5")
    e(f"s_mov_b32 s9, {wstride}")
    e("v_mul_lo_u32 v4, v4, s9")
    e("v_bfe_u32 v6, v3, 2, 2")
    e("v_xor_b32 v6, v6, v5")
    e("v_and_b32 v7, 3, v3")
    e("v_lshl_add_u32 v6, v6, 2, v7")
    e("v_lshl_add_u32 v2, v6, 4, v4")
    e("s_lshl_b32 s42, s7, 10")
    e("s_mov_b32 s43, 0")
    def issue():
        e("s_add_u32 s44, s42, s43")
        e("s_mov_b32 s45, s40")
        e("s_mov_b32 s46, s41")
        for i in range(4):
            e("s_mov_b32 m0, s44")
            e("s_add_u32 s44, s44, 4096")
            e("buffer_load_dwordx4 v1, s[12:15], s45 offen lds")
            if i < 3: e("s_add_u32 s45, s45, 32768")
        for i in range(4):
            e("s_mov_b32 m0, s44")
            e("s_add_u32 s44, s44, 4096")
            e("buffer_load_dwordx4 v2, s[16:19], s46 offen lds")
            if i < 3: e(f"s_add_u32 s46, s46, {16*wstride}")
        e("s_add_u32 s40, s40, 128")
        e(f"s_add_u32 s41, s41, {64*wstride}")
        e(f"s_add_u32 s43, s43, {T1_SLOT}")
        e(f"s_cmp_eq_u32 s43, {S*T1_SLOT}")
        e("s_cselect_b32 s43, 0, s43")
    e(f"s_mov_b32 s47, {S}")
    e.label(P+"ld0")
    issue()
    e("s_sub_u32 s47, s47, 1")
    e("s_cmp_lg_u32 s47, 0")
    e(f"s_cbranch_scc1 {P}ld0")
    def allowed(c):
        issued = min(nch, S + max(0, c-1))
        return max(0, issued - (c+2)) * 8
    e(f"s_waitcnt vmcnt({allowed(0)})")
    e("s_barrier")
    nsteady = nch - S
    al = [allowed(c) for c in range(1, nsteady+1)]
    assert len(set(al)) <= 1 or True
    e(f"s_mov_b32 s47, {nsteady}")
    e.label(P+"ld1")
    e(f"s_waitcnt vmcnt({min(al)})")
    e("s_barrier")
    issue()
    e("s_sub_u32 s47, s47, 1")
    e("s_cmp_lg_u32 s47, 0")
    e(f"s_cbranch_scc1 {P}ld1")
    for c in range(nsteady+1, nch+1):
        e(f"s_waitcnt vmcnt({allowed(c)})")
        e("s_barrier")
    e("s_endpgm")

def t1_compute_addr(e, mode):
    e("s_lshr_b32 s7, s6, 1")
    e("s_and_b32 s8, s6, 1")
    e("v_and_b32 v3, 63, v0")
    e("v_and_b32 v4, 31, v3")
    e("v_lshrrev_b32 v5, 5, v3")
    e("v_bfe_u32 v6, v3, 1, 3")
    e("v_xor_b32 v6, v6, v5")
    e("v_lshlrev_b32 v6, 4, v6")
    e("s_lshl_b32 s9, s7, 6")
    e("s_lshl_b32 s10, s8, 5")
    e("s_add_u32 s9, s9, s10")
    e("v_add_u32 v7, s9, v4")
    e("v_lshlrev_b32 v7, 7, v7")
    for s in range(4):
        e(f"v_xor_b32 v{8+s}, {s<<5}, v6")
        e(f"v_add_u32 v{8+s}, v{8+s}, v7")
        e(f"v_xor_b32 v{12+s}, 4096, v{8+s}")
    e("v_lshrrev_b32 v6, 4, v3")
    e("v_bfe_u32 v7, v3, 2, 2")
    e("v_and_b32 v18, 3, v3")
    e("v_and_b32 v19, 1, v6")
    e("v_lshl_add_u32 v18, v19, 2, v18")
    if mode == 'generic':
        e("v_and_b32 v19, 1, v18")
        e("v_lshlrev_b32 v19, 2, v19")
        e("v_lshrrev_b32 v18, 1, v18")
        e("v_or_b32 v18, v18, v19")
    else:
        e("v_and_b32 v19, 1, v18")
        e("v_lshlrev_b32 v19, 1, v19")
        e("v_bfe_u32 v20, v18, 1, 1")
        e("v_and_b32 v18, 4, v18")
        e("v_or3_b32 v18, v18, v19, v20")
    e("v_lshrrev_b32 v6, 1, v6")
    e("v_lshl_add_u32 v6, v6, 3, v7")
    e("v_lshlrev_b32 v6, 8, v6")
    e("s_lshl_b32 s9, s8, 1")
    e("s_add_u32 s9, s9, s7")
    e("v_xor_b32 v7, s9, v7")
    e("v_lshlrev_b32 v7, 6, v7")
    e("v_add3_u32 v16, v6, v7, 0")
    e("v_lshl_add_u32 v16, v18, 3, v16")
    e("v_add_u32 v16, 16384, v16")
    e("v_xor_b32 v17, 64, v16")

XF = [[32, 36], [48, 52]]
WF = [[40, 44], [56, 60]]
ACC = 64
def t1_reads(e, buf, s):
    e(f"ds_read_b128 {vr(XF[buf][0],4)}, v{8+s}")
    e(f"ds_read_b128 {vr(XF[buf][1],4)}, v{12+s}")
    for k in range(2):
        e(f"ds_read_b64_tr_b16 {vr(WF[buf][k],2)}, v{16+k} offset:{s*4096}")
        e(f"ds_read_b64_tr_b16 {vr(WF[buf][k]+2,2)}, v{16+k} offset:{s*4096+1024}")

def t1_mainloop(e, P, vmode):
    S = T1_S
    mark(e, 0)
    e("s_barrier")
    mark(e, 1)
    t1_reads(e, 0, 0)
    e("s_mov_b32 s20, 0")
    e("s_mov_b32 s21, 0")
    e.label(P+"kloop")
    e(f"s_add_u32 s22, s21, {T1_SLOT}")
    e(f"s_cmp_eq_u32 s22, {S*T1_SLOT}")
    e("s_cselect_b32 s22, 0, s22")
    e("s_sub_u32 s23, s22, s21")
    e("s_mov_b32 s21, s22")
    for s in range(4):
        buf = s & 1
        nb = buf ^ 1
        ns = (s + 1) & 3
        t1_reads(e, nb, ns)
        adv = []
        if s < 3:
            adv += [8+ns, 12+ns] if ns != 0 else []
        if s == 2:
            adv += [8, 12, 16, 17]
        e("s_waitcnt lgkmcnt(6)")
        dots = []
        for i in range(4):
            dots.append(f"v_dot2c_f32_bf16 v{22+(i&1)}, v{XF[buf][0]+i}, v21")
            dots.append(f"v_dot2c_f32_bf16 v{24+(i&1)}, v{XF[buf][0]+i}, v{XF[buf][0]+i}")
            dots.append(f"v_dot2c_f32_bf16 v{26+(i&1)}, v{WF[buf][0]+i}, v21")
        fill = dots + [f"v_add_u32 v{a}, s23, v{a}" for a in adv]
        per = (len(fill) + 3) // 4
        idx = 0
        for k in range(2):
            for kp in range(2):
                a = ACC + 16*(2*k + kp)
                if vmode:
                    e(f"v_mfma_f32_32x32x16_bf16 {vr(a,16)}, {vr(XF[buf][kp],4)}, {vr(WF[buf][k],4)}, {vr(a,16)}")
                else:
                    e(f"v_mfma_f32_32x32x16_bf16 {vr(a,16)}, {vr(WF[buf][k],4)}, {vr(XF[buf][kp],4)}, {vr(a,16)}")
                for t in fill[idx:idx+per]: e(t)
                idx += per
    e("s_barrier")
    e("s_add_u32 s20, s20, 1")
    e("s_cmp_lt_u32 s20, 8")
    e(f"s_cbranch_scc1 {P}kloop")
    mark(e, 2)
    e("s_waitcnt lgkmcnt(0)")

def t1_stats(e, scale_sreg):
    e("s_nop 2")
    e("v_add_f32 v22, v22, v23")
    e("v_add_f32 v24, v24, v25")
    e("v_add_f32 v26, v26, v27")
    e("v_mov_b32 v23, v22")
    e("v_mov_b32 v25, v24")
    e("v_mov_b32 v27, v26")
    e("s_nop 1")
    e("v_permlane32_swap_b32 v22, v23")
    e("v_permlane32_swap_b32 v24, v25")
    e("v_permlane32_swap_b32 v26, v27")
    e("s_nop 1")
    e("v_add_f32 v22, v22, v23")
    e("v_add_f32 v24, v24, v25")
    e("v_add_f32 v26, v26, v27")
    e(f"v_mul_f32 v22, {f2u(1.0/512):#x}, v22")
    e(f"v_mul_f32 v24, {f2u(1.0/512):#x}, v24")
    e("v_fma_f32 v24, -v22, v22, v24")
    e("v_max_f32 v24, 0, v24")
    e(f"v_add_f32 v24, {f2u(1e-5):#x}, v24")
    e("v_rsq_f32 v24, v24")
    e("s_nop 0")
    e(f"v_mul_f32 v24, s{scale_sreg}, v24")
    e("v_mul_f32 v22, v22, v24")
    e("v_sub_f32 v22, 0, v22")
    e("s_lshl_b32 s9, s7, 6")
    e("s_lshl_b32 s10, s8, 5")
    e("s_add_u32 s9, s9, s10")
    e("v_add_u32 v28, s9, v4")
    e("v_lshlrev_b32 v28, 2, v28")
    e("ds_write_b32 v28, v24")
    e("ds_write_b32 v28, v22 offset:512")

def t1_cs_write(e, mode):
    e("v_lshrrev_b32 v29, 2, v4")
    if mode == 'generic':
        e("v_and_b32 v30, 1, v29")
        e("v_lshlrev_b32 v30, 2, v30")
        e("v_lshrrev_b32 v29, 1, v29")
        e("v_or_b32 v29, v29, v30")
    else:
        e("v_and_b32 v30, 1, v29")
        e("v_lshlrev_b32 v30, 1, v30")
        e("v_bfe_u32 v31, v29, 1, 1")
        e("v_and_b32 v29, 4, v29")
        e("v_or3_b32 v29, v29, v30, v31")
    e("v_and_b32 v30, 3, v4")
    e("v_lshl_add_u32 v29, v29, 2, v30")
    e("s_lshl_b32 s9, s8, 6")
    e("s_lshl_b32 s10, s7, 5")
    e("s_add_u32 s9, s9, s10")
    e("v_add_u32 v30, s9, v29")
    e("v_lshlrev_b32 v30, 2, v30")
    e("ds_write_b32 v30, v26 offset:1024")
    e("s_waitcnt lgkmcnt(0)")
    e("s_barrier")
    mark(e, 3)

def t1_init(e):
    e("v_mov_b32 v21, 0x3f803f80")
    for i in range(22, 28): e(f"v_mov_b32 v{i}, 0")
    for i in range(64): e(f"v_mov_b32 v{ACC+i}, 0")


def sadd(e, d, a, b):
    e(f"s_add_u32 s{d}, s{a}, {b}")

def tile_bases(e):
    for k in range(2):
        e(f"s_xor_b32 s9, s7, {k}")
        e("s_lshl_b32 s9, s9, 5")
        e("s_lshl_b32 s10, s8, 6")
        e(f"s_add_u32 s{50+k}, s9, s10")
    for kp in range(2):
        e(f"s_xor_b32 s9, s8, {kp}")
        e("s_lshl_b32 s9, s9, 5")
        e("s_lshl_b32 s10, s7, 6")
        e(f"s_add_u32 s{52+kp}, s9, s10")

def read_tok_stats(e):
    for kp in range(2):
        e(f"v_add_u32 v28, s{52+kp}, v4")
        e("v_lshlrev_b32 v28, 2, v28")
        e(f"ds_read2st64_b32 {vr(8+2*kp,2)}, v28 offset0:0 offset1:2")

def gen_qkv(name):
    e = E(); P = "q_"
    header(e, name)
    e("s_cmp_ge_u32 s2, 192")
    e(f"s_cbranch_scc1 {P}end")
    e("s_load_dwordx4 s[24:27], s[0:1], 0")
    e("s_load_dwordx2 s[28:29], s[0:1], 80")
    e("v_lshrrev_b32 v2, 6, v0")
    e("s_and_b32 s3, s2, 7")
    e("s_lshr_b32 s4, s2, 3")
    e("v_readfirstlane_b32 s6, v2")
    e("s_and_b32 s5, s3, 3")
    e("s_lshl_b32 s5, s5, 2")
    e("s_and_b32 s9, s4, 3")
    e("s_add_u32 s30, s5, s9")
    e("s_lshr_b32 s5, s3, 2")
    e("s_mul_i32 s5, s5, 6")
    e("s_lshr_b32 s9, s4, 2")
    e("s_add_u32 s31, s5, s9")
    e("s_waitcnt lgkmcnt(0)")
    srd(e, 12, 24, 25, 2048*512*2)
    srd(e, 16, 26, 27, 512*1536*2)
    srd(e, 32, 28, 29, WS_SIZE)
    e("s_cmp_ge_u32 s6, 4")
    e(f"s_cbranch_scc0 {P}comp")
    e("s_lshl_b32 s40, s30, 17")
    e("s_lshl_b32 s41, s31, 8")
    t1_loader(e, P, 3072)
    e.label(P+"comp")
    t1_compute_addr(e, 'qk')
    t1_init(e)
    tile_bases(e)
    e("s_cmp_ge_u32 s31, 8")
    e(f"s_cbranch_scc1 {P}vpath")
    t1_mainloop(e, P+"a", False)
    e(f"s_mov_b32 s36, {f2u(0.25*1.4426950408889634):#x}")
    e("s_cmp_lt_u32 s31, 4")
    e("s_cselect_b32 s36, s36, 1.0")
    t1_stats(e, 36)
    t1_cs_write(e, 'qk')
    read_tok_stats(e)
    for k in range(2):
        e(f"v_lshl_add_u32 v28, v5, 3, s{50+k}")
        e("v_lshlrev_b32 v28, 2, v28")
        for q, off in enumerate((0, 16, 64, 80)):
            e(f"ds_read_b128 {vr(32+16*k+4*q,4)}, v28 offset:{1024+off}")
    e("s_and_b32 s9, s31, 3")
    e("s_lshl_b32 s9, s9, 19")
    e("s_cmp_lt_u32 s31, 4")
    e(f"s_cselect_b32 s10, {WS_Q:#x}, {WS_K:#x}")
    e("s_add_u32 s37, s9, s10")
    e("s_lshl_b32 s9, s30, 12")
    e("s_add_u32 s37, s37, s9")
    e("v_lshlrev_b32 v1, 4, v3")
    e("s_waitcnt lgkmcnt(0)")
    for k in range(2):
        for kp in range(2):
            a = ACC + 16*(2*k+kp)
            st = 8 + 2*kp
            for p in range(8):
                tmp = 16 + 2*(p & 1)
                e(f"v_pk_mul_f32 {vr(tmp,2)}, {vr(32+16*k+2*p,2)}, {vr(st,2)} op_sel:[0,1] op_sel_hi:[1,1]")
                e(f"v_pk_fma_f32 {vr(a+2*p,2)}, {vr(a+2*p,2)}, {vr(st,2)}, {vr(tmp,2)} op_sel_hi:[1,0,1]")
            for p in range(8):
                e(f"v_cvt_pk_bf16_f32 v{a+p}, v{a+2*p}, v{a+2*p+1}")
            e(f"s_lshl_b32 s9, s{50+k}, 12")
            e(f"s_lshl_b32 s10, s{52+kp}, 5")
            e("s_add_u32 s9, s9, s10")
            e("s_add_u32 s9, s9, s37")
            e("s_add_u32 s10, s9, 65536")
            e(f"buffer_store_dwordx4 {vr(a,4)}, v1, s[32:35], s9 offen")
            e(f"buffer_store_dwordx4 {vr(a+4,4)}, v1, s[32:35], s10 offen")
    endp(e)
    e.label(P+"vpath")
    t1_mainloop(e, P+"b", True)
    e("s_mov_b32 s36, 1.0")
    t1_stats(e, 36)
    t1_cs_write(e, 'qk')
    for k in range(2):
        e(f"v_add_u32 v28, s{50+k}, v29")
        e("v_lshlrev_b32 v28, 2, v28")
        e(f"ds_read_b32 v{8+2*k}, v28 offset:1024")
    for kp in range(2):
        e(f"v_lshl_add_u32 v28, v5, 2, s{52+kp}")
        e("v_lshlrev_b32 v28, 2, v28")
        for g in range(4):
            e(f"ds_read_b128 {vr(128+32*kp+4*g,4)}, v28 offset:{32*g}")
            e(f"ds_read_b128 {vr(144+32*kp+4*g,4)}, v28 offset:{512+32*g}")
        e("s_waitcnt lgkmcnt(0)")
    e("v_lshrrev_b32 v1, 4, v4")
    e("v_lshlrev_b32 v1, 16, v1")
    e("v_lshl_add_u32 v1, v5, 9, v1")
    e("v_and_b32 v2, 15, v4")
    e("v_lshl_add_u32 v1, v2, 4, v1")
    e("s_and_b32 s9, s31, 3")
    e("s_lshl_b32 s9, s9, 19")
    e(f"s_add_u32 s37, s9, {WS_V:#x}")
    e("s_lshl_b32 s9, s30, 12")
    e("s_add_u32 s37, s37, s9")
    for k in range(2):
        for kp in range(2):
            a = ACC + 16*(2*k+kp)
            for p in range(8):
                tmp = 16 + 2*(p & 1)
                e(f"v_pk_mul_f32 {vr(tmp,2)}, {vr(144+32*kp+2*p,2)}, {vr(8+2*k,2)} op_sel_hi:[1,0]")
                e(f"v_pk_fma_f32 {vr(a+2*p,2)}, {vr(a+2*p,2)}, {vr(128+32*kp+2*p,2)}, {vr(tmp,2)}")
            for p in range(8):
                e(f"v_cvt_pk_bf16_f32 v{a+p}, v{a+2*p}, v{a+2*p+1}")
            e(f"s_lshl_b32 s9, s{50+k}, 12")
            e(f"s_lshl_b32 s10, s{52+kp}, 5")
            e("s_add_u32 s9, s9, s10")
            e("s_add_u32 s9, s9, s37")
            e(f"buffer_store_dwordx4 {vr(a,4)}, v1, s[32:35], s9 offen")
            e(f"buffer_store_dwordx4 {vr(a+4,4)}, v1, s[32:35], s9 offen offset:256")
    endp(e)
    e.label(P+"end")
    e("s_endpgm")
    return e.text() + desc(name, 192, 64), T1_LDS

def gen_ffn1(name):
    e = E(); P = "f1_"
    header(e, name)
    e("s_cmp_ge_u32 s2, 224")
    e(f"s_cbranch_scc1 {P}end")
    e("s_load_dwordx4 s[24:27], s[0:1], 32")
    e("s_load_dwordx2 s[28:29], s[0:1], 80")
    e("v_lshrrev_b32 v2, 6, v0")
    e("s_and_b32 s3, s2, 7")
    e("s_lshr_b32 s4, s2, 3")
    e("v_readfirstlane_b32 s6, v2")
    e("s_lshl_b32 s5, s3, 1")
    e("s_and_b32 s9, s4, 1")
    e("s_add_u32 s30, s5, s9")
    e("s_lshr_b32 s31, s4, 1")
    e("s_waitcnt lgkmcnt(0)")
    srd(e, 32, 28, 29, WS_SIZE)
    srd(e, 12, 28, 29, WS_SIZE)
    srd(e, 16, 24, 25, 512*1792*2)
    srd(e, 36, 26, 27, 1792*2)
    e("s_cmp_ge_u32 s6, 4")
    e(f"s_cbranch_scc0 {P}comp")
    e("s_lshl_b32 s40, s30, 17")
    e(f"s_add_u32 s40, s40, {WS_H:#x}")
    e("s_lshl_b32 s41, s31, 8")
    t1_loader(e, P, 3584)
    e.label(P+"comp")
    t1_compute_addr(e, 'generic')
    t1_init(e)
    tile_bases(e)
    e("v_lshlrev_b32 v1, 5, v5")
    for k in range(2):
        e("s_lshl_b32 s9, s31, 7")
        e(f"s_add_u32 s9, s9, s{50+k}")
        e("s_lshl_b32 s9, s9, 1")
        e(f"buffer_load_dwordx4 {vr(128+8*k,4)}, v1, s[36:39], s9 offen")
        e(f"buffer_load_dwordx4 {vr(132+8*k,4)}, v1, s[36:39], s9 offen offset:16")
    t1_mainloop(e, P, False)
    e("s_mov_b32 s48, 1.0")
    t1_stats(e, 48)
    t1_cs_write(e, 'generic')
    read_tok_stats(e)
    for k in range(2):
        e(f"v_lshl_add_u32 v28, v5, 4, s{50+k}")
        e("v_lshlrev_b32 v28, 2, v28")
        for q in range(4):
            e(f"ds_read_b128 {vr(32+16*k+4*q,4)}, v28 offset:{1024+16*q}")
    e("s_waitcnt vmcnt(0)")
    for k in range(2):
        for i in range(8):
            e(f"v_lshlrev_b32 v{144+16*k+2*i}, 16, v{128+8*k+i}")
            e(f"v_and_b32 v{144+16*k+2*i+1}, 0xffff0000, v{128+8*k+i}")
    GA = -2.0*0.7978845608028654*1.4426950408889634
    GB = GA*0.044715
    e(f"v_mov_b32 v12, {f2u(GA):#x}")
    e(f"v_mov_b32 v13, {f2u(GB):#x}")
    e("s_movk_i32 s9, 3584")
    e("v_mul_lo_u32 v1, v4, s9")
    e("v_lshl_add_u32 v1, v5, 5, v1")
    e("s_lshl_b32 s9, s30, 7")
    e("s_mul_i32 s49, s9, 3584")
    e("s_lshl_b32 s9, s31, 8")
    e("s_add_u32 s49, s49, s9")
    e(f"s_add_u32 s49, s49, {WS_F:#x}")
    e("s_waitcnt lgkmcnt(0)")
    for k in range(2):
        for kp in range(2):
            a = ACC + 16*(2*k+kp)
            st = 8 + 2*kp
            for p0 in range(0, 8, 2):
                T = [(p0, 16, 20), (p0+1, 18, 22)]
                for p, ta, tb in T:
                    e(f"v_pk_fma_f32 {vr(ta,2)}, {vr(32+16*k+2*p,2)}, {vr(st,2)}, {vr(144+16*k+2*p,2)} op_sel:[0,1,0] op_sel_hi:[1,1,1]")
                for p, ta, tb in T:
                    e(f"v_pk_fma_f32 {vr(a+2*p,2)}, {vr(a+2*p,2)}, {vr(st,2)}, {vr(ta,2)} op_sel_hi:[1,0,1]")
                for p, ta, tb in T:
                    e(f"v_pk_mul_f32 {vr(ta,2)}, {vr(a+2*p,2)}, {vr(a+2*p,2)}")
                for p, ta, tb in T:
                    e(f"v_pk_fma_f32 {vr(ta,2)}, {vr(ta,2)}, v[12:13], v[12:13] op_sel:[0,1,0] op_sel_hi:[1,1,0]")
                for p, ta, tb in T:
                    e(f"v_pk_mul_f32 {vr(ta,2)}, {vr(ta,2)}, {vr(a+2*p,2)}")
                for p, ta, tb in T:
                    e(f"v_exp_f32 v{ta}, v{ta}")
                    e(f"v_exp_f32 v{ta+1}, v{ta+1}")
                for p, ta, tb in T:
                    e(f"v_pk_add_f32 {vr(ta,2)}, {vr(ta,2)}, 1.0 op_sel_hi:[1,0]")
                for p, ta, tb in T:
                    e(f"v_rcp_f32 v{ta}, v{ta}")
                    e(f"v_rcp_f32 v{ta+1}, v{ta+1}")
                for p, ta, tb in T:
                    e(f"v_pk_mul_f32 {vr(a+2*p,2)}, {vr(a+2*p,2)}, {vr(ta,2)}")
            for p in range(8):
                e(f"v_cvt_pk_bf16_f32 v{a+p}, v{a+2*p}, v{a+2*p+1}")
            e(f"s_mul_i32 s9, s{52+kp}, 3584")
            e(f"s_lshl_b32 s10, s{50+k}, 1")
            e("s_add_u32 s9, s9, s10")
            e("s_add_u32 s9, s9, s49")
            e(f"buffer_store_dwordx4 {vr(a,4)}, v1, s[32:35], s9 offen")
            e(f"buffer_store_dwordx4 {vr(a+4,4)}, v1, s[32:35], s9 offen offset:16")
    endp(e)
    e.label(P+"end")
    e("s_endpgm")
    return e.text() + desc(name, 192, 64), T1_LDS

T2_S = 8
T2_SLOT = 16384
T2_LDS = T2_S * T2_SLOT

def t2_loader(e, P, xstride, wstride, nch):
    S = T2_S
    e("s_sub_u32 s7, s6, 4")
    e("v_and_b32 v3, 63, v0")
    e("v_lshrrev_b32 v4, 3, v3")
    e("s_lshl_b32 s8, s7, 3")
    e("v_add_u32 v4, s8, v4")
    e(f"s_mov_b32 s9, {xstride}")
    e("v_mul_lo_u32 v8, v4, s9")
    e("v_lshrrev_b32 v5, 4, v3")
    e("s_and_b32 s8, s7, 1")
    e("s_lshl_b32 s8, s8, 2")
    e("v_add_u32 v6, s8, v5")
    e("v_and_b32 v7, 7, v3")
    e("v_xor_b32 v6, v6, v7")
    e("v_lshl_add_u32 v1, v6, 4, v8")
    e(f"s_mov_b32 s9, {wstride}")
    e("v_mul_lo_u32 v8, v4, s9")
    e("v_bfe_u32 v6, v3, 2, 1")
    e("v_and_b32 v5, 1, v5")
    e("v_xor_b32 v6, v6, v5")
    e("v_and_b32 v7, 3, v3")
    e("v_lshl_add_u32 v6, v6, 2, v7")
    e("v_lshl_add_u32 v2, v6, 4, v8")
    e("s_lshl_b32 s42, s7, 10")
    e("s_mov_b32 s43, 0")
    def issue():
        e("s_add_u32 s44, s42, s43")
        e(f"s_add_u32 s45, s40, {32*xstride}")
        e(f"s_add_u32 s46, s41, {32*wstride}")
        e("s_mov_b32 m0, s44")
        e("s_add_u32 s44, s44, 4096")
        e("buffer_load_dwordx4 v1, s[12:15], s40 offen lds")
        e("s_mov_b32 m0, s44")
        e("s_add_u32 s44, s44, 4096")
        e("buffer_load_dwordx4 v1, s[12:15], s45 offen lds")
        e("s_mov_b32 m0, s44")
        e("s_add_u32 s44, s44, 4096")
        e("buffer_load_dwordx4 v2, s[16:19], s41 offen lds")
        e("s_mov_b32 m0, s44")
        e("s_add_u32 s40, s40, 128")
        e("buffer_load_dwordx4 v2, s[16:19], s46 offen lds")
        e(f"s_add_u32 s41, s41, {64*wstride}")
        e(f"s_add_u32 s43, s43, {T2_SLOT}")
        e(f"s_and_b32 s43, s43, {S*T2_SLOT-1}")
    n0 = min(S, nch)
    e(f"s_mov_b32 s47, {n0}")
    e.label(P+"ld0")
    issue()
    e("s_sub_u32 s47, s47, 1")
    e("s_cmp_lg_u32 s47, 0")
    e(f"s_cbranch_scc1 {P}ld0")
    def allowed(c):
        issued = min(nch, S + max(0, c-1))
        return max(0, issued - (c+2)) * 4
    e(f"s_waitcnt vmcnt({allowed(0)})")
    e("s_barrier")
    nsteady = max(0, nch - S)
    if nsteady:
        al = [allowed(c) for c in range(1, nsteady+1)]
        e(f"s_mov_b32 s47, {nsteady}")
        e.label(P+"ld1")
        e(f"s_waitcnt vmcnt({min(al)})")
        e("s_barrier")
        issue()
        e("s_sub_u32 s47, s47, 1")
        e("s_cmp_lg_u32 s47, 0")
        e(f"s_cbranch_scc1 {P}ld1")
    for c in range(nsteady+1, nch+1):
        e(f"s_waitcnt vmcnt({allowed(c)})")
        e("s_barrier")
    e("s_endpgm")

def t2_compute(e, P, nch):
    S = T2_S
    e("v_bfe_u32 v6, v3, 1, 3")
    e("v_xor_b32 v6, v6, v5")
    e("v_lshlrev_b32 v6, 4, v6")
    e("s_lshl_b32 s9, s7, 5")
    e("v_add_u32 v7, s9, v4")
    e("v_lshlrev_b32 v7, 7, v7")
    for s in range(4):
        e(f"v_xor_b32 v{8+s}, {s<<5}, v6")
        e(f"v_add_u32 v{8+s}, v{8+s}, v7")
    e("v_lshrrev_b32 v6, 4, v3")
    e("v_bfe_u32 v7, v3, 2, 2")
    e("v_and_b32 v18, 3, v3")
    e("v_and_b32 v19, 1, v6")
    e("v_lshl_add_u32 v18, v19, 2, v18")
    e("v_and_b32 v19, 1, v18")
    e("v_lshlrev_b32 v19, 2, v19")
    e("v_lshrrev_b32 v18, 1, v18")
    e("v_or_b32 v18, v18, v19")
    e("v_lshrrev_b32 v6, 1, v6")
    e("v_lshl_add_u32 v6, v6, 3, v7")
    e("v_lshlrev_b32 v6, 7, v6")
    e("v_lshrrev_b32 v7, 1, v7")
    e("v_xor_b32 v7, s8, v7")
    e("v_lshlrev_b32 v7, 6, v7")
    e("v_add_u32 v12, v6, v7")
    e("v_lshl_add_u32 v12, v18, 3, v12")
    e("v_add_u32 v12, 8192, v12")
    for i in range(16): e(f"v_mov_b32 v{64+i}, 0")
    XB = [80, 112]
    def reads(buf):
        b = XB[buf]
        for s in range(4):
            e(f"ds_read_b128 {vr(b+8*s,4)}, v{8+s}")
            e(f"ds_read_b64_tr_b16 {vr(b+8*s+4,2)}, v12 offset:{s*2048}")
            e(f"ds_read_b64_tr_b16 {vr(b+8*s+6,2)}, v12 offset:{s*2048+512}")
    def advance():
        e(f"s_add_u32 s22, s21, {T2_SLOT}")
        e(f"s_and_b32 s22, s22, {S*T2_SLOT-1}")
        e("s_sub_u32 s23, s22, s21")
        e("s_mov_b32 s21, s22")
        for a in (8, 9, 10, 11, 12):
            e(f"v_add_u32 v{a}, s23, v{a}")
    e("s_mov_b32 s21, 0")
    e("s_mov_b32 s20, 0")
    mark(e, 0)
    e("s_barrier")
    mark(e, 1)
    reads(0)
    e.label(P+"kloop")
    for half in range(2):
        buf = half
        advance()
        reads(buf ^ 1)
        e("s_waitcnt lgkmcnt(12)")
        b = XB[buf]
        for s in range(4):
            e(f"v_mfma_f32_32x32x16_bf16 v[64:79], {vr(b+8*s+4,4)}, {vr(b+8*s,4)}, v[64:79]")
        e("s_barrier")
    e("s_add_u32 s20, s20, 2")
    e(f"s_cmp_lt_u32 s20, {nch}")
    e(f"s_cbranch_scc1 {P}kloop")
    mark(e, 2)
    e("s_waitcnt lgkmcnt(0)")

def gen_t2(name, P, kind):
    e = E()
    header(e, name)
    e("s_cmp_ge_u32 s2, 256")
    e(f"s_cbranch_scc1 {P}end")
    if kind == 'wo':
        e("s_load_dwordx2 s[24:25], s[0:1], 16")
        e("s_load_dwordx2 s[26:27], s[0:1], 0")
        e("s_load_dwordx2 s[28:29], s[0:1], 80")
    else:
        e("s_load_dwordx4 s[24:27], s[0:1], 48")
        e("s_load_dwordx2 s[28:29], s[0:1], 80")
        e("s_load_dwordx2 s[30:31], s[0:1], 64")
    e("v_lshrrev_b32 v2, 6, v0")
    e("s_and_b32 s3, s2, 7")
    e("s_lshr_b32 s4, s2, 3")
    e("v_readfirstlane_b32 s6, v2")
    e("s_lshl_b32 s5, s3, 2")
    e("s_and_b32 s9, s4, 3")
    e("s_add_u32 s48, s5, s9")
    e("s_lshr_b32 s49, s4, 2")
    e("s_waitcnt lgkmcnt(0)")
    srd(e, 12, 28, 29, WS_SIZE)
    if kind == 'wo':
        srd(e, 16, 24, 25, 512*512*2)
        srd(e, 32, 26, 27, 2048*512*2)
        srd(e, 36, 28, 29, WS_SIZE)
        xstride, nch = 1024, 8
    else:
        srd(e, 16, 24, 25, 1792*512*2)
        srd(e, 32, 26, 27, 512*2)
        srd(e, 36, 30, 31, 2048*512*2)
        xstride, nch = 3584, 28
    e("s_cmp_ge_u32 s6, 4")
    e(f"s_cbranch_scc0 {P}comp")
    e(f"s_mul_i32 s40, s48, {64*xstride}")
    e(f"s_add_u32 s40, s40, {(WS_O if kind=='wo' else WS_F):#x}")
    e("s_lshl_b32 s41, s49, 7")
    t2_loader(e, P, xstride, 1024, nch)
    e.label(P+"comp")
    e("s_lshr_b32 s7, s6, 1")
    e("s_and_b32 s8, s6, 1")
    e("v_and_b32 v3, 63, v0")
    e("v_and_b32 v4, 31, v3")
    e("v_lshrrev_b32 v5, 5, v3")
    e("v_lshlrev_b32 v1, 10, v4")
    e("v_lshl_add_u32 v1, v5, 5, v1")
    e("s_lshl_b32 s9, s48, 16")
    e("s_lshl_b32 s10, s7, 15")
    e("s_add_u32 s50, s9, s10")
    e("s_lshl_b32 s9, s49, 7")
    e("s_lshl_b32 s10, s8, 6")
    e("s_add_u32 s51, s9, s10")
    e("s_add_u32 s50, s50, s51")
    if kind == 'wo':
        e("buffer_load_dwordx4 v[144:147], v1, s[32:35], s50 offen")
        e("buffer_load_dwordx4 v[148:151], v1, s[32:35], s50 offen offset:16")
    else:
        e(f"s_add_u32 s52, s50, {WS_H:#x}")
        e("buffer_load_dwordx4 v[144:147], v1, s[12:15], s52 offen")
        e("buffer_load_dwordx4 v[148:151], v1, s[12:15], s52 offen offset:16")
        e("v_lshlrev_b32 v2, 5, v5")
        e("buffer_load_dwordx4 v[152:155], v2, s[32:35], s51 offen")
        e("buffer_load_dwordx4 v[156:159], v2, s[32:35], s51 offen offset:16")
    t2_compute(e, P, nch)
    e("s_waitcnt vmcnt(0)")
    e("s_nop 4")
    for i in range(8):
        e(f"v_lshlrev_b32 v16, 16, v{144+i}")
        e(f"v_and_b32 v17, 0xffff0000, v{144+i}")
        e(f"v_pk_add_f32 {vr(64+2*i,2)}, {vr(64+2*i,2)}, v[16:17]")
        if kind != 'wo':
            e(f"v_lshlrev_b32 v18, 16, v{152+i}")
            e(f"v_and_b32 v19, 0xffff0000, v{152+i}")
            e(f"v_pk_add_f32 {vr(64+2*i,2)}, {vr(64+2*i,2)}, v[18:19]")
    for p in range(8):
        e(f"v_cvt_pk_bf16_f32 v{64+p}, v{64+2*p}, v{64+2*p+1}")
    if kind == 'wo':
        e(f"s_add_u32 s52, s50, {WS_H:#x}")
        e("buffer_store_dwordx4 v[64:67], v1, s[36:39], s52 offen")
        e("buffer_store_dwordx4 v[68:71], v1, s[36:39], s52 offen offset:16")
    else:
        e("buffer_store_dwordx4 v[64:67], v1, s[36:39], s50 offen")
        e("buffer_store_dwordx4 v[68:71], v1, s[36:39], s50 offen offset:16")
    endp(e)
    e.label(P+"end")
    e("s_endpgm")
    return e.text() + desc(name, 160, 64), T2_LDS

HEADER = """; Kernarg layout for this problem (88 bytes, ptrs only, base s[0:1]):
;   offset  16: d_in[2] A_wo  shape=(512, 512) dtype=bfloat16 strides=(1024, 2) contiguous=True
;   offset  80: d_ws      268435456 bytes workspace
"""

def build(kernels=None):
    ks = [
        ("qkv_kernel", gen_qkv, 192, 512),
        ("attn_kernel", gen_attn, 256, 512),
        ("wo_kernel", lambda n: gen_t2(n, "wo_", 'wo'), 256, 512),
        ("ffn1_kernel", gen_ffn1, 224, 512),
        ("ffn2_kernel", lambda n: gen_t2(n, "f2_", 'ffn2'), 256, 512),
    ]
    head = HEADER
    body = ""
    for name, fn, grid, blk in ks:
        t, lds = fn(name)
        head += f"; @launch kernel={name} grid=({grid},1,1) block=({blk},1,1) lds={lds}\n"
        body += t
    return head + '.amdgcn_target "amdgcn-amd-amdhsa--gfx950"\n.text\n' + body

if __name__ == "__main__":
    if "--dbgts" in sys.argv:
        DBGTS = True
        sys.argv.remove("--dbgts")
    if "--instr" in sys.argv:
        INSTR = True
        sys.argv.remove("--instr")
    out = sys.argv[1] if len(sys.argv) > 1 else f"cdna_kernels/{NAME}.s"
    t = build()
    open(out, "w").write(t)
    from lint import lint
    r = lint(t)
    for x in r: print(x)
    print(len(r), "hazards;", len(t), "bytes")
```

```python
import sys, struct

NAME = "sequential_preLN__softmax_full_mha__dense_activation_gelu__prompt"

WS_Q = 0x000000
WS_K = 0x200000
WS_V = 0x400000
WS_O = 0x600000
WS_H = 0x800000
WS_F = 0xA00000
WS_PART = 0x1200000
WS_CS1 = 0x1280000
WS_SIZE = 0x10000000

def f2u(x):
    return struct.unpack('<I', struct.pack('<f', x))[0]

class E:
    def __init__(self):
        self.l = []
    def __call__(self, s):
        self.l.append("    " + s)
    def label(self, s):
        self.l.append(s + ":")
    def c(self, s):
        self.l.append("    ; " + s)
    def text(self):
        return "\n".join(self.l) + "\n"

def vr(a, n=1):
    return f"v{a}" if n == 1 else f"v[{a}:{a+n-1}]"
def sr(a, n=1):
    return f"s{a}" if n == 1 else f"s[{a}:{a+n-1}]"

def srd(e, d, lo, hi, size):
    e(f"s_mov_b32 s{d}, s{lo}")
    e(f"s_mov_b32 s{d+1}, s{hi}")
    e(f"s_mov_b32 s{d+2}, {size:#x}")
    e(f"s_mov_b32 s{d+3}, 0x00020000")

INSTR = False
WS_TS = 0x2000000
KIDX = {"qkv_kernel":0, "attn_kernel":1, "wo_kernel":2, "ffn1_kernel":3, "ffn2_kernel":4}
def ts_start(e):
    if INSTR or DBGTS:
        e("s_memrealtime s[90:91]")
        e("s_memtime s[94:95]")
def mark(e, i):
    if not INSTR: return
    e(f"s_memtime s[{70+2*i}:{71+2*i}]")
def ts_end(e, name, tag):
    if not INSTR: return
    e("s_waitcnt vmcnt(0)")
    e("s_memrealtime s[92:93]")
    e("s_memtime s[82:83]")
    e("s_load_dwordx2 s[80:81], s[0:1], 80")
    e("v_lshrrev_b32 v16, 6, v0")
    e("s_waitcnt lgkmcnt(0)")
    e("s_mov_b32 s84, s80")
    e("s_mov_b32 s85, s81")
    e(f"s_mov_b32 s86, {WS_SIZE:#x}")
    e("s_mov_b32 s87, 0x00020000")
    e("s_lshl_b32 s88, s2, 4")
    e("v_add_u32 v16, s88, v16")
    e("v_lshlrev_b32 v16, 5, v16")
    e(f"v_add_u32 v16, {WS_TS + KIDX[name]*131072:#x}, v16")
    e("s_sub_u32 s82, s82, s94")
    e("v_mov_b32 v20, s90")
    e("v_mov_b32 v21, s92")
    e("v_mov_b32 v22, s82")
    e("s_sub_u32 s70, s70, s94")
    e("s_sub_u32 s72, s72, s94")
    e("s_sub_u32 s74, s74, s94")
    e("s_sub_u32 s76, s76, s94")
    e("s_sub_u32 s78, s78, s94")
    e("v_mov_b32 v23, s70")
    e("v_mov_b32 v24, s72")
    e("v_mov_b32 v25, s74")
    e("v_mov_b32 v26, s76")
    e("v_mov_b32 v27, s78")
    e("buffer_store_dwordx4 v[20:23], v16, s[84:87], 0 offen")
    e("buffer_store_dwordx4 v[24:27], v16, s[84:87], 0 offen offset:16")

def header(e, name):
    e.name = name
    e.l.append(f".globl {name}")
    e.l.append(".p2align 8")
    e.l.append(f".type {name},@function")
    e.label(name)
    ts_start(e)

DBGTS = False
def dbg_ts(e):
    k = KIDX[e.name]
    e("s_and_b32 s92, s2, 31")
    e("s_cmp_lg_u32 s92, 0")
    e(f"s_cbranch_scc1 dbgskip{len(e.l)}")
    lab = f"dbgskip{len(e.l)-1}"
    e.dbglab = lab
    e("s_waitcnt vmcnt(0)")
    e("s_memrealtime s[92:93]")
    e("s_memtime s[82:83]")
    e("s_load_dwordx2 s[80:81], s[0:1], 72")
    e("s_waitcnt lgkmcnt(0)")
    e(f"s_add_u32 s80, s80, {(4-k)*512}")
    e("s_addc_u32 s81, s81, 0")
    e("s_mov_b32 s84, s80")
    e("s_mov_b32 s85, s81")
    e("s_mov_b32 s86, 256")
    e("s_mov_b32 s87, 0x00020000")
    e("s_not_b32 s90, s90")
    e("s_sub_u32 s82, s82, s94")
    e("v_mov_b32 v20, s92")
    e("v_mov_b32 v21, s90")
    e("v_mov_b32 v22, s82")
    e(f"v_mov_b32 v16, {8*k}")
    e(f"v_mov_b32 v17, {40+4*k}")
    e("v_cmp_eq_u32 vcc, 0, v23")
    e("s_and_saveexec_b64 s[88:89], vcc")
    e("buffer_atomic_umax v20, v16, s[84:87], 0 offen")
    e("buffer_atomic_umax v21, v16, s[84:87], 0 offen offset:4")
    e("buffer_atomic_umax v22, v17, s[84:87], 0 offen")
    e.label(e.dbglab)
def endp(e):
    if DBGTS:
        e("v_and_b32 v23, 63, v0")
        dbg_ts(e)
    else:
        ts_end(e, e.name, 0)
    e("s_endpgm")

def desc(name, vgpr, sgpr=96):
    if INSTR or DBGTS: sgpr = 96
    acc = (vgpr + 3) // 4 * 4
    return f""".section .rodata,"a"
.p2align 6
.amdhsa_kernel {name}
  .amdhsa_next_free_vgpr {vgpr}
  .amdhsa_next_free_sgpr {sgpr}
  .amdhsa_accum_offset {acc}
  .amdhsa_group_segment_fixed_size 0
  .amdhsa_kernarg_size 88
  .amdhsa_user_sgpr_count 2
  .amdhsa_user_sgpr_kernarg_segment_ptr 1
  .amdhsa_system_sgpr_workgroup_id_x 1
.end_amdhsa_kernel
.text
"""

ATT_PART = 135168
ATT_FLAG = ATT_PART + 4*4352
ATT_LDS = ATT_FLAG + 64
ATT_PF_W2 = True

def gen_attn(name):
    e = E()
    header(e, name)
    P = "at_"
    vQ = [4, 8]
    vS = [16, 32]
    vO = [48, 64]
    vP = 80
    kf = [88, 92]
    vf = [96, 104]
    vC = 112
    e("s_cmp_ge_u32 s2, 256")
    e(f"s_cbranch_scc1 {P}end")
    e("s_load_dwordx2 s[4:5], s[0:1], 80")
    e("s_load_dwordx2 s[36:37], s[0:1], 16")
    e("s_load_dwordx2 s[38:39], s[0:1], 32")
    e("s_load_dwordx2 s[40:41], s[0:1], 48")
    e("v_lshrrev_b32 v2, 6, v0")
    e("v_and_b32 v3, 63, v0")
    e("v_lshlrev_b32 v14, 4, v3")
    e("v_readfirstlane_b32 s6, v2")
    e("s_and_b32 s7, s2, 7")
    e("s_lshr_b32 s8, s2, 3")
    e("s_lshr_b32 s9, s8, 3")
    e("s_lshl_b32 s7, s7, 2")
    e("s_add_u32 s7, s7, s9")
    e("s_and_b32 s10, s8, 7")
    e("s_and_b32 s11, s6, 3")
    e("s_lshr_b32 s34, s6, 2")
    e("s_lshl_b32 s9, s10, 3")
    e("s_lshl_b32 s16, s11, 1")
    e("s_add_u32 s9, s9, s16")
    e("s_lshl_b32 s16, s7, 16")
    e("s_lshl_b32 s17, s9, 10")
    e("s_add_u32 s17, s17, s16")
    e("s_lshl_b32 s18, s34, 4")
    e("s_add_u32 s18, s18, s11")
    e("s_lshl_b32 s20, s18, 11")
    e("s_lshl_b32 s18, s18, 10")
    e("s_add_u32 s18, s18, s16")
    e(f"s_add_u32 s19, s18, {WS_V:#x}")
    e(f"s_add_u32 s18, s18, {WS_K:#x}")
    e("s_mov_b32 s15, 0x00020000")
    e(f"s_mov_b32 s14, {WS_SIZE:#x}")
    e("s_waitcnt lgkmcnt(0)")
    e("s_mov_b32 s12, s4")
    e("s_mov_b32 s13, s5")
    def dma():
        e("s_mov_b32 m0, s20")
        e("s_add_u32 s20, s20, 1024")
        e("buffer_load_dwordx4 v14, s[12:15], s18 offen lds")
        e("s_mov_b32 m0, s20")
        e("s_add_u32 s18, s18, 4096")
        e("buffer_load_dwordx4 v14, s[12:15], s19 offen lds")
        e(f"s_add_u32 s20, s20, {8192-1024}")
        e("s_add_u32 s19, s19, 4096")
    dma()
    e(f"buffer_load_dwordx4 {vr(vQ[0],4)}, v14, s[12:15], s17 offen")
    e(f"buffer_load_dwordx4 {vr(vQ[1],4)}, v14, s[12:15], s17 offen offset:1024")
    e("s_mov_b32 s22, 0x0000ffff")
    e("s_mov_b32 s23, 0x0000ffff")
    e("v_mov_b32 v2, 0x3f803f80")
    for i in range(16):
        e(f"v_mov_b32 v{vf[0]+i}, v2")
    for i in range(32):
        e(f"v_mov_b32 v{vO[0]+i}, 0")
    for i in range(4, 8):
        e(f"v_mov_b32 v{vP+i}, 0")
    e("s_lshl_b32 s28, s11, 2")
    e(f"s_add_u32 s28, s28, {ATT_FLAG}")
    e("v_mov_b32 v113, s28")
    e("v_mov_b32 v114, 0")
    e("s_cmp_lg_u32 s34, 0")
    e(f"s_cbranch_scc1 {P}noinit")
    e("ds_write_b32 v113, v114")
    e.label(P+"noinit")
    e("v_and_b32 v12, 31, v3")
    e("v_lshrrev_b32 v13, 5, v3")
    e("v_lshlrev_b32 v12, 10, v12")
    e("v_lshl_add_u32 v12, v13, 4, v12")
    e("s_lshl_b32 s26, s9, 15")
    e("s_lshl_b32 s28, s7, 5")
    e("s_add_u32 s26, s26, s28")
    e(f"s_add_u32 s26, s26, {WS_O:#x}")
    e("s_lshl_b32 s24, s34, 15")
    e("v_add_u32 v1, s24, v14")
    mark(e, 0)
    e("s_waitcnt vmcnt(0) lgkmcnt(0)")
    e("s_barrier")
    mark(e, 1)
    e(f"ds_read_b128 {vr(kf[0],4)}, v1")
    e("s_mov_b64 exec, s[22:23]")
    e(f"ds_read_b128 {vr(vf[0],4)}, v1 offset:1024")
    e(f"ds_read_b128 {vr(vf[0]+4,4)}, v1 offset:1280")
    e("s_mov_b64 exec, -1")
    dma(); dma(); dma()
    e("s_mov_b32 s21, 0")
    e("s_waitcnt lgkmcnt(2)")
    e(f"v_mfma_f32_32x32x16_bf16 {vr(vS[0],16)}, {vr(kf[0],4)}, {vr(vQ[0],4)}, 0")
    e("s_nop 7")
    e("s_nop 3")
    e.label(P+"loop")
    def unit(q, kS, vprevu1, vu0, wait0, wait1, kread, vread):
        Sc, Sn = vS[q], vS[1-q]
        X = lambda i: e(f"v_exp_f32 v{Sc+i}, v{Sc+i}")
        Cv = lambda p: e(f"v_cvt_pk_bf16_f32 v{vP+p}, v{Sc+2*p}, v{Sc+2*p+1}")
        if wait0 is not None: e(f"s_waitcnt lgkmcnt({wait0})")
        e(f"v_mfma_f32_32x32x16_bf16 {vr(Sn,16)}, {vr(kS,4)}, {vr(vQ[1-q],4)}, 0")
        X(0); X(1); X(2); X(3)
        e(f"v_mfma_f32_32x32x16_bf16 {vr(vO[1-q],16)}, {vr(vprevu1,4)}, {vr(vP+4,4)}, {vr(vO[1-q],16)}")
        Cv(0); X(4); X(5); Cv(1)
        if kread: e(kread)
        X(6); X(7); Cv(2); X(8); Cv(3); X(9)
        if wait1 is not None: e(f"s_waitcnt lgkmcnt({wait1})")
        else: e("s_nop 0")
        e(f"v_mfma_f32_32x32x16_bf16 {vr(vO[q],16)}, {vr(vu0,4)}, {vr(vP,4)}, {vr(vO[q],16)}")
        X(10); X(11); Cv(4)
        if vread:
            e("s_mov_b64 exec, s[22:23]")
            for t in vread: e(t)
            e("s_mov_b64 exec, -1")
        X(12); X(13); Cv(5); X(14); X(15); Cv(6); Cv(7)
    for jj in range(2):
        cur, nxt = jj, jj ^ 1
        base = jj * 2048
        unit(0, kf[cur], vf[nxt]+4, vf[cur], None, 2,
             f"ds_read_b128 {vr(kf[nxt],4)}, v1 offset:{base+2048}", None)
        unit(1, kf[nxt], vf[cur]+4, vf[cur], 0, None, None,
             [f"ds_read_b128 {vr(vf[nxt],4)}, v1 offset:{base+2048+1024}",
              f"ds_read_b128 {vr(vf[nxt]+4,4)}, v1 offset:{base+2048+1280}"])
    e("v_add_u32 v1, 4096, v1")
    e("s_add_u32 s21, s21, 1")
    e("s_cmp_eq_u32 s21, 1")
    e(f"s_cbranch_scc1 {P}early")
    e.label(P+"cont")
    e("s_cmp_lt_u32 s21, 8")
    e(f"s_cbranch_scc1 {P}loop")
    mark(e, 4)
    e(f"v_mfma_f32_32x32x16_bf16 {vr(vO[1],16)}, {vr(vf[1]+4,4)}, {vr(vP+4,4)}, {vr(vO[1],16)}")
    e("s_mul_i32 s28, s11, 4352")
    e(f"s_add_u32 s28, s28, {ATT_PART}")
    e("v_add_u32 v2, s28, v14")
    e("v_and_b32 v15, 31, v3")
    e("v_lshlrev_b32 v15, 2, v15")
    e("v_add_u32 v15, s28, v15")
    e("s_waitcnt lgkmcnt(0)")
    e("s_nop 7")
    e("s_nop 1")
    e("s_cmp_eq_u32 s34, 0")
    e(f"s_cbranch_scc1 {P}wr")
    e.label(P+"spin")
    e("ds_read_b32 v114, v113")
    e("s_waitcnt lgkmcnt(0)")
    e("v_readfirstlane_b32 s28, v114")
    e("s_cmp_eq_u32 s28, s34")
    e(f"s_cbranch_scc1 {P}got")
    e("s_sleep 2")
    e(f"s_branch {P}spin")
    e.label(P+"got")
    for q in range(2):
        e(f"ds_read_b128 {vr(vS[q],4)}, v2 offset:{q*2048}")
        e(f"ds_read_b128 {vr(vS[q]+4,4)}, v2 offset:{q*2048+1024}")
        e(f"ds_read_b32 v{vS[q]+8}, v15 offset:{4096+q*128}")
    e("s_waitcnt lgkmcnt(0)")
    for q in range(2):
        for i in range(9):
            e(f"v_add_f32 v{vO[q]+i}, v{vO[q]+i}, v{vS[q]+i}")
    e("s_cmp_eq_u32 s34, 3")
    e(f"s_cbranch_scc1 {P}last")
    e.label(P+"wr")
    for q in range(2):
        e(f"ds_write_b128 v2, {vr(vO[q],4)} offset:{q*2048}")
        e(f"ds_write_b128 v2, {vr(vO[q]+4,4)} offset:{q*2048+1024}")
        e(f"ds_write_b32 v15, v{vO[q]+8} offset:{4096+q*128}")
    e("s_add_u32 s28, s34, 1")
    e("v_mov_b32 v114, s28")
    e("s_waitcnt lgkmcnt(0)")
    e("ds_write_b32 v113, v114")
    e("s_waitcnt lgkmcnt(0)")
    endp(e)
    e.label(P+"last")
    e(f"v_mul_f32 v116, 0, v{vO[0]}")
    e(f"v_mul_f32 v117, 0, v{vO[1]}")
    for i in range(1, 8):
        e(f"v_fmac_f32 v116, 0, v{vO[0]+i}")
        e(f"v_fmac_f32 v117, 0, v{vO[1]+i}")
    e("v_add_f32 v116, v116, v117")
    e(f"s_mov_b32 s28, {f2u(2.0**-100):#x}")
    e(f"s_mov_b32 s29, {f2u(2.0**100):#x}")
    e(f"v_cmp_le_f32 s[30:31], s28, v{vO[0]+8}")
    e(f"v_cmp_ge_f32 s[32:33], s29, v{vO[0]+8}")
    e(f"v_cmp_le_f32 s[42:43], s28, v{vO[1]+8}")
    e(f"v_cmp_ge_f32 s[44:45], s29, v{vO[1]+8}")
    e("v_cmp_eq_f32 vcc, 0, v116")
    e("s_nop 1")
    e("s_and_b64 s[30:31], s[30:31], s[32:33]")
    e("s_and_b64 s[42:43], s[42:43], s[44:45]")
    e("s_and_b64 s[30:31], s[30:31], vcc")
    e("s_and_b64 s[30:31], s[30:31], s[42:43]")
    e("s_cmp_eq_u64 s[30:31], -1")
    e(f"s_cbranch_scc1 {P}fin")
    for q in range(2):
        L = f"{P}fb{q}"
        e("v_mov_b32 v1, v14")
        e("v_mov_b32 v2, 0xff800000")
        e("s_mov_b32 s21, 0")
        e.label(L+"a")
        e(f"ds_read_b128 {vr(kf[0],4)}, v1")
        e("s_waitcnt lgkmcnt(0)")
        e(f"v_mfma_f32_32x32x16_bf16 {vr(vS[0],16)}, {vr(kf[0],4)}, {vr(vQ[q],4)}, 0")
        e("v_add_u32 v1, 2048, v1")
        e("s_nop 7")
        e("s_nop 7")
        for i in range(0, 16, 2):
            e(f"v_max3_f32 v2, v2, v{vS[0]+i}, v{vS[0]+i+1}")
        e("s_add_u32 s21, s21, 1")
        e("s_cmp_lt_u32 s21, 64")
        e(f"s_cbranch_scc1 {L}a")
        e("v_mov_b32 v15, v2")
        e("s_nop 1")
        e("v_permlane32_swap_b32 v2, v15")
        e("s_nop 1")
        e("v_max_f32 v2, v2, v15")
        e("v_sub_f32 v2, 0, v2")
        for i in range(16):
            e(f"v_mov_b32 v{vC+i}, v2")
            e(f"v_mov_b32 v{vO[q]+i}, 0")
        e("v_mov_b32 v1, v14")
        e("s_mov_b32 s21, 0")
        e.label(L+"b")
        e(f"ds_read_b128 {vr(kf[0],4)}, v1")
        e("s_mov_b64 exec, s[22:23]")
        e(f"ds_read_b128 {vr(vf[0],4)}, v1 offset:1024")
        e(f"ds_read_b128 {vr(vf[0]+4,4)}, v1 offset:1280")
        e("s_mov_b64 exec, -1")
        e("s_waitcnt lgkmcnt(0)")
        e(f"v_mfma_f32_32x32x16_bf16 {vr(vS[0],16)}, {vr(kf[0],4)}, {vr(vQ[q],4)}, {vr(vC,16)}")
        e("v_add_u32 v1, 2048, v1")
        e("s_nop 7")
        e("s_nop 7")
        for i in range(16):
            e(f"v_exp_f32 v{vS[0]+i}, v{vS[0]+i}")
        e("s_nop 0")
        for p in range(8):
            e(f"v_cvt_pk_bf16_f32 v{vP+p}, v{vS[0]+2*p}, v{vS[0]+2*p+1}")
        e("s_nop 1")
        e(f"v_mfma_f32_32x32x16_bf16 {vr(vO[q],16)}, {vr(vf[0],4)}, {vr(vP,4)}, {vr(vO[q],16)}")
        e(f"v_mfma_f32_32x32x16_bf16 {vr(vO[q],16)}, {vr(vf[0]+4,4)}, {vr(vP+4,4)}, {vr(vO[q],16)}")
        e("s_add_u32 s21, s21, 1")
        e("s_cmp_lt_u32 s21, 64")
        e(f"s_cbranch_scc1 {L}b")
        e("s_nop 7")
        e("s_nop 7")
    e.label(P+"fin")
    for q in range(2):
        e(f"v_rcp_f32 v{116+q}, v{vO[q]+8}")
    e("s_nop 0")
    for q in range(2):
        for i in range(8):
            e(f"v_mul_f32 v{vO[q]+i}, v{vO[q]+i}, v{116+q}")
        for i in range(4):
            e(f"v_cvt_pk_bf16_f32 v{vS[q]+i}, v{vO[q]+2*i}, v{vO[q]+2*i+1}")
    e(f"buffer_store_dwordx4 {vr(vS[0],4)}, v12, s[12:15], s26 offen")
    e("s_add_u32 s26, s26, 32768")
    e(f"buffer_store_dwordx4 {vr(vS[1],4)}, v12, s[12:15], s26 offen")
    endp(e)
    e.label(P+"early")
    e("s_waitcnt vmcnt(0)")
    e("s_barrier")
    mark(e, 3)
    e("s_mov_b32 s44, s36"); e("s_mov_b32 s45, s37"); e(f"s_mov_b32 s46, {512*512*2:#x}"); e("s_mov_b32 s47, 0x00020000")
    e("s_lshl_b32 s52, s8, 14")
    e("s_lshl_b32 s53, s6, 10")
    e("s_add_u32 s52, s52, s53")
    e("buffer_load_dwordx4 v[120:123], v14, s[44:47], s52 offen")
    e("s_mul_i32 s52, s8, 57344")
    e("s_mul_i32 s53, s6, 3584")
    e("s_add_u32 s52, s52, s53")
    e("s_mov_b32 s44, s38"); e("s_mov_b32 s45, s39"); e(f"s_mov_b32 s46, {512*1792*2:#x}")
    for off in (0, 1024, 2048, 2560):
        e(f"buffer_load_dwordx4 v[120:123], v14, s[44:47], s52 offen offset:{off}")
    if ATT_PF_W2:
        e("s_mov_b32 s48, s40"); e("s_mov_b32 s49, s41"); e(f"s_mov_b32 s50, {512*1792*2:#x}"); e("s_mov_b32 s51, 0x00020000")
        for off in (0, 1024, 2048, 2560):
            e(f"buffer_load_dwordx4 v[120:123], v14, s[48:51], s52 offen offset:{off}")
    e(f"s_branch {P}cont")
    e.label(P+"end")
    e("s_endpgm")
    return e.text() + desc(name, 128, 64), ATT_LDS

def loader_schedule(e, P, nch, S, per, burst0, nbar, need, free, issue, tail=None):
    ops = []
    issued = 0
    for _ in range(min(burst0, nch)):
        ops.append(('issue',)); issued += 1
    for b in range(nbar):
        nd = min(need(b), nch)
        assert issued >= nd, (b, issued, nd)
        ops.append(('bar', (issued - nd) * per))
        lim = min(nch, free(b))
        while issued < lim:
            ops.append(('issue',)); issued += 1
    assert issued == nch
    i = 0; lab = 0
    while i < len(ops):
        if ops[i] == ('issue',):
            n = 0
            while i + n < len(ops) and ops[i+n] == ('issue',): n += 1
            if n > 1:
                e(f"s_mov_b32 s47, {n}")
                e.label(f"{P}li{lab}")
                issue()
                e("s_sub_u32 s47, s47, 1")
                e("s_cmp_lg_u32 s47, 0")
                e(f"s_cbranch_scc1 {P}li{lab}")
                lab += 1
            else:
                issue()
            i += n
        else:
            n = 0
            while i + 2*n + 1 < len(ops) and ops[i+2*n] == ops[i] and ops[i+2*n+1] == ('issue',) and not (i+2*n+2 < len(ops) and ops[i+2*n+2] == ('issue',)): n += 1
            if n > 1:
                e(f"s_mov_b32 s47, {n}")
                e.label(f"{P}lb{lab}")
                e(f"s_waitcnt vmcnt({ops[i][1]})")
                e("s_barrier")
                issue()
                e("s_sub_u32 s47, s47, 1")
                e("s_cmp_lg_u32 s47, 0")
                e(f"s_cbranch_scc1 {P}lb{lab}")
                lab += 1
                i += 2*n
            else:
                e(f"s_waitcnt vmcnt({ops[i][1]})")
                e("s_barrier")
                i += 1
    if tail: tail()
    e("s_endpgm")

T1_S = 5
T1_SLOT = 32768
T1_LDS = T1_S * T1_SLOT

def t1_loader_addr(e, wstride):
    e("s_sub_u32 s7, s6, 4")
    e("v_and_b32 v3, 63, v0")
    e("v_lshrrev_b32 v4, 3, v3")
    e("s_lshl_b32 s8, s7, 3")
    e("v_add_u32 v4, s8, v4")
    e("v_lshlrev_b32 v4, 10, v4")
    e("v_lshrrev_b32 v5, 4, v3")
    e("s_and_b32 s8, s7, 1")
    e("s_lshl_b32 s8, s8, 2")
    e("v_add_u32 v6, s8, v5")
    e("v_and_b32 v7, 7, v3")
    e("v_xor_b32 v6, v6, v7")
    e("v_lshl_add_u32 v1, v6, 4, v4")
    e("s_lshl_b32 s8, s7, 2")
    e("v_add_u32 v4, s8, v5")
    e(f"v_mul_u32_u24 v4, {wstride}, v4")
    e("v_bfe_u32 v6, v3, 2, 2")
    e("v_xor_b32 v6, v6, v5")
    e("v_and_b32 v7, 3, v3")
    e("v_lshl_add_u32 v6, v6, 2, v7")
    e("v_lshl_add_u32 v2, v6, 4, v4")
    e("s_lshl_b32 s42, s7, 10")
    e("s_mov_b32 s43, 0")

def t1_loader(e, P, wstride, nch=8, tail=None):
    S = T1_S
    def issue():
        e("s_add_u32 s44, s42, s43")
        e("s_mov_b32 s45, s40")
        e("s_mov_b32 s46, s41")
        for i in range(4):
            e("s_mov_b32 m0, s44")
            e("s_add_u32 s44, s44, 4096")
            e("buffer_load_dwordx4 v1, s[12:15], s45 offen lds")
            e(f"s_add_u32 m0, s44, {16384-4096}")
            e(f"s_add_u32 s45, s45, 32768")
            e("buffer_load_dwordx4 v2, s[16:19], s46 offen lds")
            e(f"s_add_u32 s46, s46, {16*wstride}")
        e("s_add_u32 s40, s40, 128")
        e(f"s_add_u32 s41, s41, {64*wstride}")
        e(f"s_add_u32 s43, s43, {T1_SLOT}")
        e(f"s_cmp_eq_u32 s43, {S*T1_SLOT}")
        e("s_cselect_b32 s43, 0, s43")
    loader_schedule(e, P, nch, S, 8, 3, nch + 1,
                    need=lambda b: b + 1,
                    free=lambda b: (S + b - 1) if b >= 1 else 4,
                    issue=issue, tail=tail)

def t1_compute_addr(e, mode):
    e("s_lshr_b32 s7, s6, 1")
    e("s_and_b32 s8, s6, 1")
    e("v_and_b32 v3, 63, v0")
    e("v_and_b32 v4, 31, v3")
    e("v_lshrrev_b32 v5, 5, v3")
    e("v_bfe_u32 v6, v3, 1, 3")
    e("v_xor_b32 v6, v6, v5")
    e("v_lshlrev_b32 v6, 4, v6")
    e("s_lshl_b32 s9, s7, 6")
    e("s_lshl_b32 s10, s8, 5")
    e("s_add_u32 s9, s9, s10")
    e("v_add_u32 v7, s9, v4")
    e("v_lshlrev_b32 v7, 7, v7")
    for s in range(4):
        e(f"v_xor_b32 v{8+s}, {s<<5}, v6")
        e(f"v_add_u32 v{8+s}, v{8+s}, v7")
        e(f"v_xor_b32 v{12+s}, 4096, v{8+s}")
    e("v_lshrrev_b32 v6, 4, v3")
    e("v_bfe_u32 v7, v3, 2, 2")
    e("v_and_b32 v18, 3, v3")
    e("v_and_b32 v19, 1, v6")
    e("v_lshl_add_u32 v18, v19, 2, v18")
    if mode == 'generic':
        e("v_and_b32 v19, 1, v18")
        e("v_lshlrev_b32 v19, 2, v19")
        e("v_lshrrev_b32 v18, 1, v18")
        e("v_or_b32 v18, v18, v19")
    else:
        e("v_and_b32 v19, 1, v18")
        e("v_lshlrev_b32 v19, 1, v19")
        e("v_bfe_u32 v20, v18, 1, 1")
        e("v_and_b32 v18, 4, v18")
        e("v_or3_b32 v18, v18, v19, v20")
    e("v_lshrrev_b32 v6, 1, v6")
    e("v_lshl_add_u32 v6, v6, 3, v7")
    e("v_lshlrev_b32 v6, 8, v6")
    e("s_lshl_b32 s9, s8, 1")
    e("s_add_u32 s9, s9, s7")
    e("v_xor_b32 v7, s9, v7")
    e("v_lshlrev_b32 v7, 6, v7")
    e("v_add3_u32 v16, v6, v7, 0")
    e("v_lshl_add_u32 v16, v18, 3, v16")
    e("v_add_u32 v16, 16384, v16")
    e("v_xor_b32 v17, 64, v16")

FB = 32
ACC = 96
def fx(s, kp): return FB + 16*s + 4*kp
def fw(s, k): return FB + 16*s + 8 + 4*k
def t1_read_list(s):
    r = []
    r.append(f"ds_read_b128 {vr(fx(s,0),4)}, v{8+s}")
    r.append(f"ds_read_b64_tr_b16 {vr(fw(s,0),2)}, v16 offset:{s*4096}")
    r.append(f"ds_read_b64_tr_b16 {vr(fw(s,0)+2,2)}, v16 offset:{s*4096+1024}")
    r.append(f"ds_read_b128 {vr(fx(s,1),4)}, v{12+s}")
    r.append(f"ds_read_b64_tr_b16 {vr(fw(s,1),2)}, v17 offset:{s*4096}")
    r.append(f"ds_read_b64_tr_b16 {vr(fw(s,1)+2,2)}, v17 offset:{s*4096+1024}")
    return r

def t1_mainloop(e, P, vmode, colsum):
    S = T1_S
    mark(e, 0)
    e("s_barrier")
    mark(e, 1)
    for t in t1_read_list(0): e(t)
    for t in t1_read_list(1): e(t)
    e("s_mov_b32 s20, 0")
    e("s_mov_b32 s21, 0")
    e.label(P+"kloop")
    e(f"s_add_u32 s22, s21, {T1_SLOT}")
    e(f"s_cmp_eq_u32 s22, {S*T1_SLOT}")
    e("s_cselect_b32 s22, 0, s22")
    e("s_sub_u32 s23, s22, s21")
    e("s_mov_b32 s21, s22")
    for s in range(4):
        ns = (s + 2) & 3
        e("s_waitcnt lgkmcnt(6)")
        if s == 2:
            e("s_barrier")
        rds = t1_read_list(ns)
        post = []
        if s == 0: post = [10, 14]
        if s == 1: post = [11, 15, 8, 12, 9, 13, 16, 17]
        post = [f"v_add_u32 v{a}, s23, v{a}" for a in post]
        mf = []
        for k in range(2):
            for kp in range(2):
                a = ACC + 16*(2*k + kp)
                if vmode:
                    mf.append(f"v_mfma_f32_32x32x16_bf16 {vr(a,16)}, {vr(fx(s,kp),4)}, {vr(fw(s,k),4)}, {vr(a,16)}")
                else:
                    mf.append(f"v_mfma_f32_32x32x16_bf16 {vr(a,16)}, {vr(fw(s,k),4)}, {vr(fx(s,kp),4)}, {vr(a,16)}")
        for g in range(4):
            e(mf[g])
            for t in rds[2*g:2*g+2]: e(t)
            if g == 3:
                for t in post: e(t)
        if colsum:
            e(f"v_mfma_f32_16x16x32_bf16 v[24:27], v[20:23], {vr(fw(s,0),4)}, v[24:27]")
    e("s_add_u32 s20, s20, 1")
    e("s_cmp_lt_u32 s20, 8")
    e(f"s_cbranch_scc1 {P}kloop")
    mark(e, 2)
    e("s_waitcnt lgkmcnt(0)")

def t1_init(e, colsum):
    for i in range(64): e(f"v_mov_b32 v{ACC+i}, 0")
    if colsum:
        for i in range(4): e(f"v_mov_b32 v{24+i}, 0")
        e("v_and_b32 v28, 15, v3")
        e("v_bfe_u32 v29, v3, 4, 1")
        e("v_cmp_eq_u32 vcc, v28, v29")
        e("v_mov_b32 v30, 0x3f803f80")
        e("s_nop 0")
        e("v_cndmask_b32 v20, 0, v30, vcc")
        for i in range(1, 4): e(f"v_mov_b32 v{20+i}, v20")

def t1_cs_write(e):
    e("s_barrier")
    e("v_lshrrev_b32 v29, 2, v4")
    e("v_and_b32 v30, 1, v29")
    e("v_lshlrev_b32 v30, 1, v30")
    e("v_bfe_u32 v31, v29, 1, 1")
    e("v_and_b32 v29, 4, v29")
    e("v_or3_b32 v29, v29, v30, v31")
    e("v_and_b32 v30, 3, v4")
    e("v_lshl_add_u32 v29, v29, 2, v30")
    e("v_add_u32 v30, s50, v29")
    e("v_lshlrev_b32 v30, 2, v30")
    e("v_lshl_add_u32 v30, v5, 12, v30")
    e("v_permlane16_swap_b32 v24, v25")
    e("s_nop 1")
    e("ds_write_b32 v30, v24 offset:1024")
    e("s_waitcnt lgkmcnt(0)")
    e("s_barrier")
    mark(e, 3)

def t1_stats_waves(e, P):
    S = T1_S
    e("s_sub_u32 s7, s6, 8")
    e("v_and_b32 v3, 63, v0")
    e("v_and_b32 v4, 31, v3")
    e("v_lshrrev_b32 v5, 5, v3")
    e("v_bfe_u32 v6, v3, 1, 3")
    e("v_xor_b32 v6, v6, v5")
    e("v_lshlrev_b32 v6, 4, v6")
    e("s_lshl_b32 s9, s7, 5")
    e("v_add_u32 v7, s9, v4")
    e("v_lshlrev_b32 v7, 7, v7")
    for s in range(4):
        e(f"v_xor_b32 v{8+s}, {s<<5}, v6")
        e(f"v_add_u32 v{8+s}, v{8+s}, v7")
    e("v_mov_b32 v21, 0xffff0000")
    for i in range(4): e(f"v_mov_b32 v{22+i}, 0")
    e("s_mov_b32 s20, 0")
    e("s_mov_b32 s21, 0")
    e.label(P+"st")
    e("s_barrier")
    for s in range(4):
        e(f"ds_read_b128 {vr(32+4*s,4)}, v{8+s}")
    e(f"s_add_u32 s22, s21, {T1_SLOT}")
    e(f"s_cmp_eq_u32 s22, {S*T1_SLOT}")
    e("s_cselect_b32 s22, 0, s22")
    e("s_sub_u32 s23, s22, s21")
    e("s_mov_b32 s21, s22")
    for s in range(4): e(f"v_add_u32 v{8+s}, s23, v{8+s}")
    for s in range(4):
        e(f"s_waitcnt lgkmcnt({3-s})")
        for i in range(4):
            r = 32 + 4*s + i
            t0, t1 = 26 + 2*(i & 1), 27 + 2*(i & 1)
            e(f"v_lshlrev_b32 v{t0}, 16, v{r}")
            e(f"v_and_b32 v{t1}, v21, v{r}")
            e(f"v_add_f32 v22, v22, v{t0}")
            e(f"v_add_f32 v23, v23, v{t1}")
            e(f"v_fmac_f32 v24, v{t0}, v{t0}")
            e(f"v_fmac_f32 v25, v{t1}, v{t1}")
    e("s_add_u32 s20, s20, 1")
    e("s_cmp_lt_u32 s20, 8")
    e(f"s_cbranch_scc1 {P}st")
    e("s_barrier")
    e("v_add_f32 v22, v22, v23")
    e("v_add_f32 v24, v24, v25")
    e("v_mov_b32 v23, v22")
    e("v_mov_b32 v25, v24")
    e("s_nop 1")
    e("v_permlane32_swap_b32 v22, v23")
    e("v_permlane32_swap_b32 v24, v25")
    e("s_nop 1")
    e("v_add_f32 v22, v22, v23")
    e("v_add_f32 v24, v24, v25")
    e(f"v_mul_f32 v22, {f2u(1.0/512):#x}, v22")
    e(f"v_mul_f32 v24, {f2u(1.0/512):#x}, v24")
    e("v_fma_f32 v24, -v22, v22, v24")
    e("v_max_f32 v24, 0, v24")
    e(f"v_add_f32 v24, {f2u(1e-5):#x}, v24")
    e("v_rsq_f32 v24, v24")
    e(f"s_mov_b32 s36, {f2u(0.25*1.4426950408889634):#x}")
    e("s_cmp_lt_u32 s31, 4")
    e("s_cselect_b32 s36, s36, 1.0")
    e("v_mul_f32 v24, s36, v24")
    e("v_mul_f32 v22, v22, v24")
    e("v_sub_f32 v22, 0, v22")
    e("v_add_u32 v28, s9, v4")
    e("v_lshlrev_b32 v28, 2, v28")
    e("s_barrier")
    e("ds_write_b32 v28, v24")
    e("ds_write_b32 v28, v22 offset:512")
    e("s_waitcnt lgkmcnt(0)")
    e("s_barrier")
    e("s_endpgm")

def tile_bases(e):
    for k in range(2):
        e(f"s_xor_b32 s9, s7, {k}")
        e("s_lshl_b32 s9, s9, 5")
        e("s_lshl_b32 s10, s8, 6")
        e(f"s_add_u32 s{50+k}, s9, s10")
    for kp in range(2):
        e(f"s_xor_b32 s9, s8, {kp}")
        e("s_lshl_b32 s9, s9, 5")
        e("s_lshl_b32 s10, s7, 6")
        e(f"s_add_u32 s{52+kp}, s9, s10")

def gen_colsum(e, P):
    e("v_cmp_gt_u32 vcc, 512, v0")
    e("s_and_saveexec_b64 s[8:9], vcc")
    e(f"s_cbranch_execz {P}csdone")
    e("s_load_dwordx2 s[44:45], s[0:1], 32")
    e("s_sub_u32 s3, s2, 192")
    e("v_and_b32 v1, 15, v0")
    e("v_lshrrev_b32 v2, 4, v0")
    e("v_mul_u32_u24 v3, 3584, v2")
    e("v_lshl_add_u32 v3, v1, 4, v3")
    e("s_lshl_b32 s4, s3, 8")
    e("s_waitcnt lgkmcnt(0)")
    srd(e, 12, 44, 45, 512*1792*2)
    srd(e, 32, 28, 29, WS_SIZE)
    for i in range(16):
        e(f"buffer_load_dwordx4 {vr(16+4*i,4)}, v3, s[12:15], s4 offen")
        e(f"s_add_u32 s4, s4, {32*3584}")
    for i in range(8): e(f"v_mov_b32 v{8+i}, 0")
    for i in range(16):
        e(f"s_waitcnt vmcnt({15-i})")
        for j in range(4):
            r = 16 + 4*i + j
            e(f"v_lshlrev_b32 v4, 16, v{r}")
            e(f"v_and_b32 v5, 0xffff0000, v{r}")
            e(f"v_add_f32 v{8+2*j}, v{8+2*j}, v4")
            e(f"v_add_f32 v{9+2*j}, v{9+2*j}, v5")
    e("v_lshlrev_b32 v4, 9, v2")
    e("v_lshl_add_u32 v4, v1, 5, v4")
    e("ds_write_b128 v4, v[8:11]")
    e("ds_write_b128 v4, v[12:15] offset:16")
    e("s_waitcnt lgkmcnt(0)")
    e("s_barrier")
    e("v_cmp_gt_u32 vcc, 128, v0")
    e("s_and_saveexec_b64 s[8:9], vcc")
    e(f"s_cbranch_execz {P}csdone")
    e("v_lshlrev_b32 v4, 2, v0")
    for i in range(32):
        e(f"ds_read_b32 v{16+i}, v4 offset:{512*i}")
        if i == 14: e("s_waitcnt lgkmcnt(0)")
        if i == 29: e("s_waitcnt lgkmcnt(0)")
    e("s_waitcnt lgkmcnt(0)")
    for i in range(1, 32):
        e(f"v_add_f32 v16, v16, v{16+i}")
    e("s_lshl_b32 s4, s3, 9")
    e(f"s_add_u32 s4, s4, {WS_CS1:#x}")
    e("buffer_store_dword v16, v4, s[32:35], s4 offen")
    e.label(P+"csdone")
    e("s_endpgm")

def gen_qkv(name):
    e = E(); P = "q_"
    header(e, name)
    e("s_cmp_ge_u32 s2, 206")
    e(f"s_cbranch_scc1 {P}end")
    e("s_load_dwordx4 s[24:27], s[0:1], 0")
    e("s_load_dwordx2 s[28:29], s[0:1], 80")
    e("s_cmp_ge_u32 s2, 192")
    e(f"s_cbranch_scc1 {P}cs")
    e("v_lshrrev_b32 v2, 6, v0")
    e("s_and_b32 s3, s2, 7")
    e("s_lshr_b32 s4, s2, 3")
    e("v_readfirstlane_b32 s6, v2")
    e("s_and_b32 s5, s3, 3")
    e("s_lshl_b32 s5, s5, 2")
    e("s_and_b32 s9, s4, 3")
    e("s_add_u32 s30, s5, s9")
    e("s_lshr_b32 s5, s3, 2")
    e("s_mul_i32 s5, s5, 6")
    e("s_lshr_b32 s9, s4, 2")
    e("s_add_u32 s31, s5, s9")
    e("s_cmp_ge_u32 s6, 4")
    e(f"s_cbranch_scc0 {P}comp")
    e("s_cmp_ge_u32 s6, 8")
    e(f"s_cbranch_scc1 {P}stw")
    t1_loader_addr(e, 3072)
    e("s_lshl_b32 s40, s30, 17")
    e("s_lshl_b32 s41, s31, 8")
    e("s_waitcnt lgkmcnt(0)")
    srd(e, 12, 24, 25, 2048*512*2)
    srd(e, 16, 26, 27, 512*1536*2)
    t1_loader(e, P, 3072)
    e.label(P+"stw")
    t1_stats_waves(e, P)
    e.label(P+"cs")
    gen_colsum(e, P)
    e.label(P+"comp")
    t1_compute_addr(e, 'qk')
    t1_init(e, True)
    tile_bases(e)
    e("s_waitcnt lgkmcnt(0)")
    srd(e, 32, 28, 29, WS_SIZE)
    e("s_cmp_ge_u32 s31, 8")
    e(f"s_cbranch_scc1 {P}vpath")
    t1_mainloop(e, P+"a", False, True)
    t1_cs_write(e)
    for kp in range(2):
        e(f"v_add_u32 v28, s{52+kp}, v4")
        e("v_lshlrev_b32 v28, 2, v28")
        e(f"ds_read2st64_b32 {vr(8+2*kp,2)}, v28 offset0:0 offset1:2")
    for k in range(2):
        e(f"v_lshl_add_u32 v28, v5, 3, s{50+k}")
        e("v_lshlrev_b32 v28, 2, v28")
        for q, off in enumerate((0, 16, 64, 80)):
            e(f"ds_read_b128 {vr(32+16*k+4*q,4)}, v28 offset:{1024+off}")
    e("s_and_b32 s9, s31, 3")
    e("s_lshl_b32 s9, s9, 19")
    e("s_cmp_lt_u32 s31, 4")
    e(f"s_cselect_b32 s10, {WS_Q:#x}, {WS_K:#x}")
    e("s_add_u32 s37, s9, s10")
    e("s_lshl_b32 s9, s30, 12")
    e("s_add_u32 s37, s37, s9")
    e("v_lshlrev_b32 v1, 4, v3")
    e("s_waitcnt lgkmcnt(0)")
    for k in range(2):
        for kp in range(2):
            a = ACC + 16*(2*k+kp)
            st = 8 + 2*kp
            for p in range(8):
                tmp = 64 + 2*p
                e(f"v_pk_mul_f32 {vr(tmp,2)}, {vr(32+16*k+2*p,2)}, {vr(st,2)} op_sel:[0,1] op_sel_hi:[1,1]")
            for p in range(8):
                tmp = 64 + 2*p
                e(f"v_pk_fma_f32 {vr(a+2*p,2)}, {vr(a+2*p,2)}, {vr(st,2)}, {vr(tmp,2)} op_sel_hi:[1,0,1]")
            for p in range(8):
                e(f"v_cvt_pk_bf16_f32 v{a+p}, v{a+2*p}, v{a+2*p+1}")
            e(f"s_lshl_b32 s9, s{50+k}, 12")
            e(f"s_lshl_b32 s10, s{52+kp}, 5")
            e("s_add_u32 s9, s9, s10")
            e("s_add_u32 s9, s9, s37")
            e("s_add_u32 s10, s9, 65536")
            e(f"buffer_store_dwordx4 {vr(a,4)}, v1, s[32:35], s9 offen")
            e(f"buffer_store_dwordx4 {vr(a+4,4)}, v1, s[32:35], s10 offen")
    endp(e)
    e.label(P+"vpath")
    t1_mainloop(e, P+"b", True, True)
    t1_cs_write(e)
    for k in range(2):
        e(f"v_add_u32 v28, s{50+k}, v29")
        e("v_lshlrev_b32 v28, 2, v28")
        e(f"ds_read_b32 v{8+2*k}, v28 offset:1024")
    for kp in range(2):
        e(f"v_lshl_add_u32 v28, v5, 2, s{52+kp}")
        e("v_lshlrev_b32 v28, 2, v28")
        for g in range(4):
            e(f"ds_read_b128 {vr(32+32*kp+4*g,4)}, v28 offset:{32*g}")
            e(f"ds_read_b128 {vr(48+32*kp+4*g,4)}, v28 offset:{512+32*g}")
        e("s_waitcnt lgkmcnt(0)")
    e("v_lshrrev_b32 v1, 4, v4")
    e("v_lshlrev_b32 v1, 16, v1")
    e("v_lshl_add_u32 v1, v5, 9, v1")
    e("v_and_b32 v2, 15, v4")
    e("v_lshl_add_u32 v1, v2, 4, v1")
    e("s_and_b32 s9, s31, 3")
    e("s_lshl_b32 s9, s9, 19")
    e(f"s_add_u32 s37, s9, {WS_V:#x}")
    e("s_lshl_b32 s9, s30, 12")
    e("s_add_u32 s37, s37, s9")
    for k in range(2):
        for kp in range(2):
            a = ACC + 16*(2*k+kp)
            for p in range(8):
                tmp = 12 + 2*p
                e(f"v_pk_mul_f32 {vr(tmp,2)}, {vr(48+32*kp+2*p,2)}, {vr(8+2*k,2)} op_sel_hi:[1,0]")
            for p in range(8):
                tmp = 12 + 2*p
                e(f"v_pk_fma_f32 {vr(a+2*p,2)}, {vr(a+2*p,2)}, {vr(32+32*kp+2*p,2)}, {vr(tmp,2)}")
            for p in range(8):
                e(f"v_cvt_pk_bf16_f32 v{a+p}, v{a+2*p}, v{a+2*p+1}")
            e(f"s_lshl_b32 s9, s{50+k}, 12")
            e(f"s_lshl_b32 s10, s{52+kp}, 5")
            e("s_add_u32 s9, s9, s10")
            e("s_add_u32 s9, s9, s37")
            e(f"buffer_store_dwordx4 {vr(a,4)}, v1, s[32:35], s9 offen")
            e(f"buffer_store_dwordx4 {vr(a+4,4)}, v1, s[32:35], s9 offen offset:256")
    endp(e)
    e.label(P+"end")
    e("s_endpgm")
    return e.text() + desc(name, 160, 64), T1_LDS

def gen_ffn1(name):
    e = E(); P = "f1_"
    header(e, name)
    e("s_cmp_ge_u32 s2, 224")
    e(f"s_cbranch_scc1 {P}end")
    e("s_load_dwordx4 s[24:27], s[0:1], 32")
    e("s_load_dwordx2 s[28:29], s[0:1], 80")
    e("v_lshrrev_b32 v2, 6, v0")
    e("s_and_b32 s3, s2, 7")
    e("s_lshr_b32 s4, s2, 3")
    e("v_readfirstlane_b32 s6, v2")
    e("s_lshl_b32 s5, s3, 1")
    e("s_and_b32 s9, s4, 1")
    e("s_add_u32 s30, s5, s9")
    e("s_lshr_b32 s31, s4, 1")
    e("s_cmp_ge_u32 s6, 4")
    e(f"s_cbranch_scc0 {P}comp")
    t1_loader_addr(e, 3584)
    e("s_lshl_b32 s40, s30, 17")
    e(f"s_add_u32 s40, s40, {WS_H:#x}")
    e("s_lshl_b32 s41, s31, 8")
    e("s_waitcnt lgkmcnt(0)")
    srd(e, 12, 28, 29, WS_SIZE)
    srd(e, 16, 24, 25, 512*1792*2)
    def w2_prefetch():
        e("s_load_dwordx2 s[48:49], s[0:1], 48")
        e("v_and_b32 v3, 63, v0")
        e("v_lshlrev_b32 v3, 4, v3")
        e("s_lshl_b32 s50, s4, 16")
        e("s_lshl_b32 s51, s7, 14")
        e("s_add_u32 s50, s50, s51")
        e("s_waitcnt lgkmcnt(0)")
        srd(e, 52, 48, 49, 1792*512*2)
        for i in range(16):
            e(f"buffer_load_dwordx4 v[8:11], v3, s[52:55], s50 offen")
            e("s_add_u32 s50, s50, 1024")
    t1_loader(e, P, 3584)
    e.label(P+"comp")
    t1_compute_addr(e, 'generic')
    tile_bases(e)
    e("s_waitcnt lgkmcnt(0)")
    srd(e, 32, 28, 29, WS_SIZE)
    srd(e, 36, 26, 27, 1792*2)
    e("v_lshlrev_b32 v1, 3, v4")
    e("v_lshl_add_u32 v1, v5, 17, v1")
    for kp in range(2):
        e("s_lshl_b32 s9, s30, 7")
        e(f"s_add_u32 s9, s9, s{52+kp}")
        e("s_lshl_b32 s9, s9, 3")
        e(f"s_add_u32 s9, s9, {WS_PART:#x}")
        for q in range(8):
            e(f"buffer_load_dwordx2 {vr(160+16*kp+2*q,2)}, v1, s[32:35], s9 offen")
            if q < 7: e("s_add_u32 s9, s9, 16384")
    e("v_lshlrev_b32 v2, 5, v5")
    e("v_lshlrev_b32 v6, 6, v5")
    for k in range(2):
        e("s_lshl_b32 s9, s31, 7")
        e(f"s_add_u32 s9, s9, s{50+k}")
        e("s_lshl_b32 s10, s9, 2")
        e(f"s_add_u32 s10, s10, {WS_CS1:#x}")
        e("s_lshl_b32 s9, s9, 1")
        e(f"buffer_load_dwordx4 {vr(192+8*k,4)}, v2, s[36:39], s9 offen")
        e(f"buffer_load_dwordx4 {vr(196+8*k,4)}, v2, s[36:39], s9 offen offset:16")
        for q in range(4):
            e(f"buffer_load_dwordx4 {vr(208+16*k+4*q,4)}, v6, s[32:35], s10 offen offset:{16*q}")
    t1_init(e, False)
    t1_mainloop(e, P, False, False)
    e("s_waitcnt vmcnt(0)")
    for kp in range(2):
        b = 160 + 16*kp
        for i in range(1, 8):
            e(f"v_pk_add_f32 {vr(b,2)}, {vr(b,2)}, {vr(b+2*i,2)}")
    for kp in range(2):
        b = 160 + 16*kp
        e(f"v_mov_b32 v{b+2}, v{b}")
        e(f"v_mov_b32 v{b+3}, v{b+1}")
    e("s_nop 1")
    for kp in range(2):
        b = 160 + 16*kp
        e(f"v_permlane32_swap_b32 v{b}, v{b+2}")
        e(f"v_permlane32_swap_b32 v{b+1}, v{b+3}")
    e("s_nop 1")
    for kp in range(2):
        b = 160 + 16*kp; d = 24 + 2*kp
        e(f"v_add_f32 v{b}, v{b}, v{b+2}")
        e(f"v_add_f32 v{b+1}, v{b+1}, v{b+3}")
        e(f"v_mul_f32 v{b}, {f2u(1.0/512):#x}, v{b}")
        e(f"v_mul_f32 v{b+1}, {f2u(1.0/512):#x}, v{b+1}")
        e(f"v_fma_f32 v{b+1}, -v{b}, v{b}, v{b+1}")
        e(f"v_max_f32 v{b+1}, 0, v{b+1}")
        e(f"v_add_f32 v{b+1}, {f2u(1e-5):#x}, v{b+1}")
        e(f"v_rsq_f32 v{d}, v{b+1}")
        e("s_nop 0")
        e(f"v_mul_f32 v{d+1}, v{b}, v{d}")
        e(f"v_sub_f32 v{d+1}, 0, v{d+1}")
    e("s_waitcnt vmcnt(0)")
    for k in range(2):
        for i in range(8):
            e(f"v_lshlrev_b32 v{160+16*k+2*i}, 16, v{192+8*k+i}")
            e(f"v_and_b32 v{160+16*k+2*i+1}, 0xffff0000, v{192+8*k+i}")
    GA = -2.0*0.7978845608028654*1.4426950408889634
    GB = GA*0.044715
    e(f"v_mov_b32 v12, {f2u(GA):#x}")
    e(f"v_mov_b32 v13, {f2u(GB):#x}")
    e("v_mul_u32_u24 v1, 3584, v4")
    e("v_lshl_add_u32 v1, v5, 5, v1")
    e("s_lshl_b32 s9, s30, 7")
    e("s_mul_i32 s49, s9, 3584")
    e("s_lshl_b32 s9, s31, 8")
    e("s_add_u32 s49, s49, s9")
    e(f"s_add_u32 s49, s49, {WS_F:#x}")
    e("s_nop 4")
    for k in range(2):
        for kp in range(2):
            a = ACC + 16*(2*k+kp)
            st = 24 + 2*kp
            for p0 in range(0, 8, 4):
                T = [(p0+i, 32+2*i) for i in range(4)]
                for p, ta in T:
                    e(f"v_pk_fma_f32 {vr(ta,2)}, {vr(208+16*k+2*p,2)}, {vr(st,2)}, {vr(160+16*k+2*p,2)} op_sel:[0,1,0] op_sel_hi:[1,1,1]")
                for p, ta in T:
                    e(f"v_pk_fma_f32 {vr(a+2*p,2)}, {vr(a+2*p,2)}, {vr(st,2)}, {vr(ta,2)} op_sel_hi:[1,0,1]")
                for p, ta in T:
                    e(f"v_pk_mul_f32 {vr(ta,2)}, {vr(a+2*p,2)}, {vr(a+2*p,2)}")
                for p, ta in T:
                    e(f"v_pk_fma_f32 {vr(ta,2)}, {vr(ta,2)}, v[12:13], v[12:13] op_sel:[0,1,0] op_sel_hi:[1,1,0]")
                for p, ta in T:
                    e(f"v_pk_mul_f32 {vr(ta,2)}, {vr(ta,2)}, {vr(a+2*p,2)}")
                for p, ta in T:
                    e(f"v_exp_f32 v{ta}, v{ta}")
                    e(f"v_exp_f32 v{ta+1}, v{ta+1}")
                for p, ta in T:
                    e(f"v_pk_add_f32 {vr(ta,2)}, {vr(ta,2)}, 1.0 op_sel_hi:[1,0]")
                for p, ta in T:
                    e(f"v_rcp_f32 v{ta}, v{ta}")
                    e(f"v_rcp_f32 v{ta+1}, v{ta+1}")
                for p, ta in T:
                    e(f"v_pk_mul_f32 {vr(a+2*p,2)}, {vr(a+2*p,2)}, {vr(ta,2)}")
            for p in range(8):
                e(f"v_cvt_pk_bf16_f32 v{a+p}, v{a+2*p}, v{a+2*p+1}")
            e(f"s_mul_i32 s9, s{52+kp}, 3584")
            e(f"s_lshl_b32 s10, s{50+k}, 1")
            e("s_add_u32 s9, s9, s10")
            e("s_add_u32 s9, s9, s49")
            e(f"buffer_store_dwordx4 {vr(a,4)}, v1, s[32:35], s9 offen")
            e(f"buffer_store_dwordx4 {vr(a+4,4)}, v1, s[32:35], s9 offen offset:16")
    endp(e)
    e.label(P+"end")
    e("s_endpgm")
    return e.text() + desc(name, 240, 64), T1_LDS

T2_S = 8
T2_SLOT = 16384
T2_LDS = T2_S * T2_SLOT

def t2_loader_addr(e, xstride, wstride):
    e("s_sub_u32 s7, s6, 4")
    e("v_and_b32 v3, 63, v0")
    e("v_lshrrev_b32 v4, 3, v3")
    e("s_lshl_b32 s8, s7, 3")
    e("v_add_u32 v4, s8, v4")
    e(f"v_mul_u32_u24 v8, {xstride}, v4")
    e("v_lshrrev_b32 v5, 4, v3")
    e("s_and_b32 s8, s7, 1")
    e("s_lshl_b32 s8, s8, 2")
    e("v_add_u32 v6, s8, v5")
    e("v_and_b32 v7, 7, v3")
    e("v_xor_b32 v6, v6, v7")
    e("v_lshl_add_u32 v1, v6, 4, v8")
    e(f"v_mul_u32_u24 v8, {wstride}, v4")
    e("v_bfe_u32 v6, v3, 2, 1")
    e("v_and_b32 v5, 1, v5")
    e("v_xor_b32 v6, v6, v5")
    e("v_and_b32 v7, 3, v3")
    e("v_lshl_add_u32 v6, v6, 2, v7")
    e("v_lshl_add_u32 v2, v6, 4, v8")
    e("s_lshl_b32 s42, s7, 10")
    e("s_mov_b32 s43, 0")

def t2_loader(e, P, xstride, wstride, nch):
    S = T2_S
    def issue():
        e("s_add_u32 s44, s42, s43")
        e(f"s_add_u32 s45, s40, {32*xstride}")
        e(f"s_add_u32 s46, s41, {32*wstride}")
        e("s_mov_b32 m0, s44")
        e("s_add_u32 s44, s44, 4096")
        e("buffer_load_dwordx4 v1, s[12:15], s40 offen lds")
        e(f"s_add_u32 m0, s44, 4096")
        e("s_add_u32 s40, s40, 128")
        e("buffer_load_dwordx4 v2, s[16:19], s41 offen lds")
        e("s_mov_b32 m0, s44")
        e(f"s_add_u32 s41, s41, {64*wstride}")
        e("buffer_load_dwordx4 v1, s[12:15], s45 offen lds")
        e(f"s_add_u32 m0, s44, 8192")
        e(f"s_add_u32 s43, s43, {T2_SLOT}")
        e("buffer_load_dwordx4 v2, s[16:19], s46 offen lds")
        e(f"s_and_b32 s43, s43, {S*T2_SLOT-1}")
    loader_schedule(e, P, nch, S, 4, 5, nch + 1,
                    need=lambda b: b + 2,
                    free=lambda b: S + b,
                    issue=issue)

def t2_compute(e, P, nch):
    S = T2_S
    e("v_bfe_u32 v6, v3, 1, 3")
    e("v_xor_b32 v6, v6, v5")
    e("v_lshlrev_b32 v6, 4, v6")
    e("s_lshl_b32 s9, s7, 5")
    e("v_add_u32 v7, s9, v4")
    e("v_lshlrev_b32 v7, 7, v7")
    for s in range(4):
        e(f"v_xor_b32 v{8+s}, {s<<5}, v6")
        e(f"v_add_u32 v{8+s}, v{8+s}, v7")
    e("v_lshrrev_b32 v6, 4, v3")
    e("v_bfe_u32 v7, v3, 2, 2")
    e("v_and_b32 v18, 3, v3")
    e("v_and_b32 v19, 1, v6")
    e("v_lshl_add_u32 v18, v19, 2, v18")
    e("v_and_b32 v19, 1, v18")
    e("v_lshlrev_b32 v19, 2, v19")
    e("v_lshrrev_b32 v18, 1, v18")
    e("v_or_b32 v18, v18, v19")
    e("v_lshrrev_b32 v6, 1, v6")
    e("v_lshl_add_u32 v6, v6, 3, v7")
    e("v_lshlrev_b32 v6, 7, v6")
    e("v_lshrrev_b32 v7, 1, v7")
    e("v_xor_b32 v7, s8, v7")
    e("v_lshlrev_b32 v7, 6, v7")
    e("v_add_u32 v12, v6, v7")
    e("v_lshl_add_u32 v12, v18, 3, v12")
    e("v_add_u32 v12, 8192, v12")
    for i in range(16): e(f"v_mov_b32 v{64+i}, 0")
    XB = [80, 112]
    def reads(buf, s):
        b = XB[buf]
        return [f"ds_read_b128 {vr(b+8*s,4)}, v{8+s}",
                f"ds_read_b64_tr_b16 {vr(b+8*s+4,2)}, v12 offset:{s*2048}",
                f"ds_read_b64_tr_b16 {vr(b+8*s+6,2)}, v12 offset:{s*2048+512}"]
    def advance():
        e(f"s_add_u32 s22, s21, {T2_SLOT}")
        e(f"s_and_b32 s22, s22, {S*T2_SLOT-1}")
        e("s_sub_u32 s23, s22, s21")
        e("s_mov_b32 s21, s22")
        for a in (8, 9, 10, 11, 12):
            e(f"v_add_u32 v{a}, s23, v{a}")
    e("s_mov_b32 s21, 0")
    e("s_mov_b32 s20, 0")
    mark(e, 0)
    e("s_barrier")
    mark(e, 1)
    for s in range(4):
        for t in reads(0, s): e(t)
    advance()
    e.label(P+"kloop")
    for half in range(2):
        buf = half
        b = XB[buf]
        e("s_waitcnt lgkmcnt(0)")
        for s in range(4):
            e(f"v_mfma_f32_32x32x16_bf16 v[64:79], {vr(b+8*s+4,4)}, {vr(b+8*s,4)}, v[64:79]")
            for t in reads(buf ^ 1, s): e(t)
        advance()
        e("s_barrier")
    e("s_add_u32 s20, s20, 2")
    e(f"s_cmp_lt_u32 s20, {nch}")
    e(f"s_cbranch_scc1 {P}kloop")
    mark(e, 2)
    e("s_waitcnt lgkmcnt(0)")

def gen_t2(name, P, kind):
    e = E()
    header(e, name)
    e("s_cmp_ge_u32 s2, 256")
    e(f"s_cbranch_scc1 {P}end")
    if kind == 'wo':
        e("s_load_dwordx2 s[24:25], s[0:1], 16")
        e("s_load_dwordx2 s[26:27], s[0:1], 0")
        e("s_load_dwordx2 s[28:29], s[0:1], 80")
        xstride, nch = 1024, 8
    else:
        e("s_load_dwordx4 s[24:27], s[0:1], 48")
        e("s_load_dwordx2 s[28:29], s[0:1], 80")
        e("s_load_dwordx2 s[30:31], s[0:1], 64")
        xstride, nch = 3584, 28
    e("v_lshrrev_b32 v2, 6, v0")
    e("s_and_b32 s3, s2, 7")
    e("s_lshr_b32 s4, s2, 3")
    e("v_readfirstlane_b32 s6, v2")
    e("s_lshl_b32 s5, s3, 2")
    e("s_and_b32 s9, s4, 3")
    e("s_add_u32 s48, s5, s9")
    e("s_lshr_b32 s49, s4, 2")
    e("s_cmp_ge_u32 s6, 4")
    e(f"s_cbranch_scc0 {P}comp")
    t2_loader_addr(e, xstride, 1024)
    e(f"s_mul_i32 s40, s48, {64*xstride}")
    e(f"s_add_u32 s40, s40, {(WS_O if kind=='wo' else WS_F):#x}")
    e("s_lshl_b32 s41, s49, 7")
    e("s_waitcnt lgkmcnt(0)")
    srd(e, 12, 28, 29, WS_SIZE)
    srd(e, 16, 24, 25, (512 if kind == 'wo' else 1792)*512*2)
    t2_loader(e, P, xstride, 1024, nch)
    e.label(P+"comp")
    e("s_lshr_b32 s7, s6, 1")
    e("s_and_b32 s8, s6, 1")
    e("v_and_b32 v3, 63, v0")
    e("v_and_b32 v4, 31, v3")
    e("v_lshrrev_b32 v5, 5, v3")
    e("v_lshlrev_b32 v1, 10, v4")
    e("v_lshl_add_u32 v1, v5, 5, v1")
    e("s_lshl_b32 s9, s48, 16")
    e("s_lshl_b32 s10, s7, 15")
    e("s_add_u32 s50, s9, s10")
    e("s_lshl_b32 s9, s49, 7")
    e("s_lshl_b32 s10, s8, 6")
    e("s_add_u32 s51, s9, s10")
    e("s_add_u32 s50, s50, s51")
    e("s_waitcnt lgkmcnt(0)")
    srd(e, 12, 28, 29, WS_SIZE)
    if kind == 'wo':
        srd(e, 32, 26, 27, 2048*512*2)
        e("buffer_load_dwordx4 v[144:147], v1, s[32:35], s50 offen")
        e("buffer_load_dwordx4 v[148:151], v1, s[32:35], s50 offen offset:16")
    else:
        srd(e, 32, 26, 27, 512*2)
        srd(e, 36, 30, 31, 2048*512*2)
        e(f"s_add_u32 s52, s50, {WS_H:#x}")
        e("buffer_load_dwordx4 v[144:147], v1, s[12:15], s52 offen")
        e("buffer_load_dwordx4 v[148:151], v1, s[12:15], s52 offen offset:16")
        e("v_lshlrev_b32 v2, 5, v5")
        e("buffer_load_dwordx4 v[152:155], v2, s[32:35], s51 offen")
        e("buffer_load_dwordx4 v[156:159], v2, s[32:35], s51 offen offset:16")
    t2_compute(e, P, nch)
    e("s_waitcnt vmcnt(0)")
    e("s_nop 4")
    for i in range(8):
        e(f"v_lshlrev_b32 v{80+2*i}, 16, v{144+i}")
        e(f"v_and_b32 v{81+2*i}, 0xffff0000, v{144+i}")
    for i in range(8):
        e(f"v_pk_add_f32 {vr(64+2*i,2)}, {vr(64+2*i,2)}, {vr(80+2*i,2)}")
    if kind != 'wo':
        for i in range(8):
            e(f"v_lshlrev_b32 v{96+2*i}, 16, v{152+i}")
            e(f"v_and_b32 v{97+2*i}, 0xffff0000, v{152+i}")
        for i in range(8):
            e(f"v_pk_add_f32 {vr(64+2*i,2)}, {vr(64+2*i,2)}, {vr(96+2*i,2)}")
    for p in range(8):
        e(f"v_cvt_pk_bf16_f32 v{96+p}, v{64+2*p}, v{64+2*p+1}")
    if kind == 'wo':
        e(f"s_add_u32 s52, s50, {WS_H:#x}")
        e("buffer_store_dwordx4 v[96:99], v1, s[12:15], s52 offen")
        e("buffer_store_dwordx4 v[100:103], v1, s[12:15], s52 offen offset:16")
        e("v_mov_b32 v20, 0")
        e("v_mov_b32 v21, 0")
        e("v_mov_b32 v22, 0")
        e("v_mov_b32 v23, 0")
        for p in range(8):
            e(f"v_lshlrev_b32 v{24+2*(p&1)}, 16, v{96+p}")
            e(f"v_and_b32 v{25+2*(p&1)}, 0xffff0000, v{96+p}")
            e(f"v_add_f32 v20, v20, v{24+2*(p&1)}")
            e(f"v_add_f32 v22, v22, v{25+2*(p&1)}")
            e(f"v_fmac_f32 v21, v{24+2*(p&1)}, v{24+2*(p&1)}")
            e(f"v_fmac_f32 v23, v{25+2*(p&1)}, v{25+2*(p&1)}")
        e("v_add_f32 v20, v20, v22")
        e("v_add_f32 v21, v21, v23")
        e("v_mov_b32 v22, v20")
        e("v_mov_b32 v23, v21")
        e("s_nop 1")
        e("v_permlane32_swap_b32 v20, v22")
        e("v_permlane32_swap_b32 v21, v23")
        e("s_nop 1")
        e("v_add_f32 v20, v20, v22")
        e("v_add_f32 v21, v21, v23")
        e("v_lshlrev_b32 v2, 3, v4")
        e("s_lshl_b32 s9, s48, 9")
        e("s_lshl_b32 s10, s7, 8")
        e("s_add_u32 s9, s9, s10")
        e("s_lshl_b32 s10, s49, 15")
        e("s_add_u32 s9, s9, s10")
        e("s_lshl_b32 s10, s8, 14")
        e("s_add_u32 s9, s9, s10")
        e(f"s_add_u32 s9, s9, {WS_PART:#x}")
        e("buffer_store_dwordx2 v[20:21], v2, s[12:15], s9 offen")
    else:
        e("buffer_store_dwordx4 v[96:99], v1, s[36:39], s50 offen")
        e("buffer_store_dwordx4 v[100:103], v1, s[36:39], s50 offen offset:16")
    endp(e)
    e.label(P+"end")
    e("s_endpgm")
    return e.text() + desc(name, 160, 64), T2_LDS

HEADER = """; Kernarg layout for this problem (88 bytes, ptrs only, base s[0:1]):
;   offset  16: d_in[2] A_wo  shape=(512, 512) dtype=bfloat16 strides=(1024, 2) contiguous=True
;   offset  80: d_ws      268435456 bytes workspace
"""

def build(kernels=None):
    ks = [
        ("qkv_kernel", gen_qkv, 206, 768),
        ("attn_kernel", gen_attn, 256, 1024),
        ("wo_kernel", lambda n: gen_t2(n, "wo_", 'wo'), 256, 512),
        ("ffn1_kernel", gen_ffn1, 224, 512),
        ("ffn2_kernel", lambda n: gen_t2(n, "f2_", 'ffn2'), 256, 512),
    ]
    head = HEADER
    body = ""
    for name, fn, grid, blk in ks:
        t, lds = fn(name)
        head += f"; @launch kernel={name} grid=({grid},1,1) block=({blk},1,1) lds={lds}\n"
        body += t
    return head + '.amdgcn_target "amdgcn-amd-amdhsa--gfx950"\n.text\n' + body

if __name__ == "__main__":
    if "--dbgts" in sys.argv:
        DBGTS = True
        sys.argv.remove("--dbgts")
    if "--instr" in sys.argv:
        INSTR = True
        sys.argv.remove("--instr")
    out = sys.argv[1] if len(sys.argv) > 1 else f"cdna_kernels/{NAME}.s"
    t = build()
    open(out, "w").write(t)
    from lint import lint
    r = lint(t)
    for x in r: print(x)
    print(len(r), "hazards;", len(t), "bytes")
```

```python
import sys, struct

NAME = "sequential_preLN__softmax_full_mha__dense_activation_gelu__prompt"

WS_Q = 0x000000
WS_K = 0x200000
WS_V = 0x400000
WS_O = 0x600000
WS_H = 0x800000
WS_F = 0xA00000
WS_PART = 0x1200000
WS_CS1 = 0x1280000
WS_WFO = 0x1300000
WS_WF2 = 0x1400000
WS_SIZE = 0x10000000

def f2u(x):
    return struct.unpack('<I', struct.pack('<f', x))[0]

class E:
    def __init__(self):
        self.l = []
    def __call__(self, s):
        if STORE_FLAGS and s.startswith("buffer_store_dwordx4") and getattr(self, "name", "") in ("qkv_kernel", "ffn1_kernel", "attn_kernel", "wo_kernel"):
            s = s + " " + STORE_FLAGS
        self.l.append("    " + s)
    def label(self, s):
        self.l.append(s + ":")
    def c(self, s):
        self.l.append("    ; " + s)
    def text(self):
        return "\n".join(self.l) + "\n"

def vr(a, n=1):
    return f"v{a}" if n == 1 else f"v[{a}:{a+n-1}]"
def sr(a, n=1):
    return f"s{a}" if n == 1 else f"s[{a}:{a+n-1}]"

def srd(e, d, lo, hi, size):
    e(f"s_mov_b32 s{d}, s{lo}")
    e(f"s_mov_b32 s{d+1}, s{hi}")
    e(f"s_mov_b32 s{d+2}, {size:#x}")
    e(f"s_mov_b32 s{d+3}, 0x00020000")

INSTR = False
STORE_FLAGS = ''
LOADER_TS = ('qkv_kernel','ffn1_kernel','ffn2_kernel','wo_kernel')
WS_TS = 0x2000000
KIDX = {"qkv_kernel":0, "attn_kernel":1, "wo_kernel":2, "ffn1_kernel":3, "ffn2_kernel":4}
def ts_start(e):
    if INSTR or DBGTS:
        e("s_memrealtime s[90:91]")
        e("s_memtime s[94:95]")
        e("s_waitcnt lgkmcnt(0)")
        e("s_mov_b32 s97, s94")
def mark(e, i):
    if not INSTR: return
    e(f"s_memtime s[{70+2*i}:{71+2*i}]")
def ts_end(e, name, tag):
    if not INSTR: return
    e("s_waitcnt vmcnt(0)")
    e("s_memrealtime s[92:93]")
    e("s_memtime s[82:83]")
    e("s_load_dwordx2 s[80:81], s[0:1], 80")
    e("v_lshrrev_b32 v16, 6, v0")
    e("s_waitcnt lgkmcnt(0)")
    e("s_mov_b32 s84, s80")
    e("s_mov_b32 s85, s81")
    e(f"s_mov_b32 s86, {WS_SIZE:#x}")
    e("s_mov_b32 s87, 0x00020000")
    e("s_lshl_b32 s88, s2, 4")
    e("v_add_u32 v16, s88, v16")
    e("v_lshlrev_b32 v16, 5, v16")
    e(f"v_add_u32 v16, {WS_TS + KIDX[name]*131072:#x}, v16")
    e("s_sub_u32 s82, s82, s94")
    e("v_mov_b32 v20, s90")
    e("v_mov_b32 v21, s92")
    e("v_mov_b32 v22, s82")
    e("s_sub_u32 s70, s70, s94")
    e("s_sub_u32 s72, s72, s94")
    e("s_sub_u32 s74, s74, s94")
    e("s_sub_u32 s76, s76, s94")
    e("s_sub_u32 s78, s78, s94")
    e("v_mov_b32 v23, s70")
    e("v_mov_b32 v24, s72")
    e("v_mov_b32 v25, s74")
    e("v_mov_b32 v26, s76")
    e("v_mov_b32 v27, s78")
    e("buffer_store_dwordx4 v[20:23], v16, s[84:87], 0 offen")
    e("buffer_store_dwordx4 v[24:27], v16, s[84:87], 0 offen offset:16")

def header(e, name):
    e.name = name
    e.l.append(f".globl {name}")
    e.l.append(".p2align 8")
    e.l.append(f".type {name},@function")
    e.label(name)
    ts_start(e)

DBGTS = False
def dbg_ts(e):
    k = KIDX[e.name]
    e("s_and_b32 s92, s2, 31")
    e("s_cmp_lg_u32 s92, 0")
    e(f"s_cbranch_scc1 dbgskip{len(e.l)}")
    lab = f"dbgskip{len(e.l)-1}"
    e.dbglab = lab
    e("s_waitcnt vmcnt(0)")
    e("s_memrealtime s[92:93]")
    e("s_memtime s[82:83]")
    e("s_load_dwordx2 s[80:81], s[0:1], 72")
    e("s_waitcnt lgkmcnt(0)")
    e(f"s_add_u32 s80, s80, {(4-k)*512}")
    e("s_addc_u32 s81, s81, 0")
    e("s_mov_b32 s84, s80")
    e("s_mov_b32 s85, s81")
    e("s_mov_b32 s86, 256")
    e("s_mov_b32 s87, 0x00020000")
    e("s_not_b32 s90, s90")
    e("s_sub_u32 s82, s82, s94")
    e("v_mov_b32 v20, s92")
    e("v_mov_b32 v21, s90")
    e("v_mov_b32 v22, s82")
    e(f"v_mov_b32 v16, {8*k}")
    e(f"v_mov_b32 v17, {40+4*k}")
    e("v_cmp_eq_u32 vcc, 0, v23")
    e("s_and_saveexec_b64 s[88:89], vcc")
    e("buffer_atomic_umax v20, v16, s[84:87], 0 offen")
    e("buffer_atomic_umax v21, v16, s[84:87], 0 offen offset:4")
    e("buffer_atomic_umax v22, v17, s[84:87], 0 offen")
    e.label(e.dbglab)
def endp(e):
    if DBGTS:
        e("v_and_b32 v23, 63, v0")
        dbg_ts(e)
    else:
        ts_end(e, e.name, 0)
    e("s_endpgm")

def desc(name, vgpr, sgpr=96):
    if INSTR or DBGTS: sgpr = 102
    acc = (vgpr + 3) // 4 * 4
    return f""".section .rodata,"a"
.p2align 6
.amdhsa_kernel {name}
  .amdhsa_next_free_vgpr {vgpr}
  .amdhsa_next_free_sgpr {sgpr}
  .amdhsa_accum_offset {acc}
  .amdhsa_group_segment_fixed_size 0
  .amdhsa_kernarg_size 88
  .amdhsa_user_sgpr_count 2
  .amdhsa_user_sgpr_kernarg_segment_ptr 1
  .amdhsa_system_sgpr_workgroup_id_x 1
.end_amdhsa_kernel
.text
"""

ATT_PART = 135168
ATT_FLAG = ATT_PART + 4*4352
ATT_LDS = ATT_FLAG + 64
ATT_PF_W2 = True

def gen_attn(name):
    e = E()
    header(e, name)
    P = "at_"
    vQ = [4, 8]
    vS = [16, 32]
    vO = [48, 64]
    vP = 80
    kf = [88, 92]
    vf = [96, 104]
    vC = 112
    e("s_cmp_ge_u32 s2, 256")
    e(f"s_cbranch_scc1 {P}end")
    e("s_load_dwordx2 s[4:5], s[0:1], 80")
    e("s_load_dwordx2 s[36:37], s[0:1], 16")
    e("s_load_dwordx2 s[38:39], s[0:1], 32")
    e("s_load_dwordx2 s[40:41], s[0:1], 48")
    e("v_lshrrev_b32 v2, 6, v0")
    e("v_and_b32 v3, 63, v0")
    e("v_lshlrev_b32 v14, 4, v3")
    e("v_readfirstlane_b32 s6, v2")
    e("s_and_b32 s7, s2, 7")
    e("s_lshr_b32 s8, s2, 3")
    e("s_lshr_b32 s9, s8, 3")
    e("s_lshl_b32 s7, s7, 2")
    e("s_add_u32 s7, s7, s9")
    e("s_and_b32 s10, s8, 7")
    e("s_and_b32 s11, s6, 3")
    e("s_lshr_b32 s34, s6, 2")
    e("s_lshl_b32 s9, s10, 3")
    e("s_lshl_b32 s16, s11, 1")
    e("s_add_u32 s9, s9, s16")
    e("s_lshl_b32 s16, s7, 16")
    e("s_lshl_b32 s17, s9, 10")
    e("s_add_u32 s17, s17, s16")
    e("s_lshl_b32 s18, s34, 4")
    e("s_add_u32 s18, s18, s11")
    e("s_lshl_b32 s20, s18, 11")
    e("s_lshl_b32 s18, s18, 10")
    e("s_add_u32 s18, s18, s16")
    e(f"s_add_u32 s19, s18, {WS_V:#x}")
    e(f"s_add_u32 s18, s18, {WS_K:#x}")
    e("s_mov_b32 s15, 0x00020000")
    e(f"s_mov_b32 s14, {WS_SIZE:#x}")
    e("s_waitcnt lgkmcnt(0)")
    e("s_mov_b32 s12, s4")
    e("s_mov_b32 s13, s5")
    def dma():
        e("s_mov_b32 m0, s20")
        e("s_add_u32 s20, s20, 1024")
        e("buffer_load_dwordx4 v14, s[12:15], s18 offen lds")
        e("s_mov_b32 m0, s20")
        e("s_add_u32 s18, s18, 4096")
        e("buffer_load_dwordx4 v14, s[12:15], s19 offen lds")
        e(f"s_add_u32 s20, s20, {8192-1024}")
        e("s_add_u32 s19, s19, 4096")
    dma()
    e(f"buffer_load_dwordx4 {vr(vQ[0],4)}, v14, s[12:15], s17 offen")
    e(f"buffer_load_dwordx4 {vr(vQ[1],4)}, v14, s[12:15], s17 offen offset:1024")
    e("s_mov_b32 s22, 0x0000ffff")
    e("s_mov_b32 s23, 0x0000ffff")
    e("v_mov_b32 v2, 0x3f803f80")
    for i in range(16):
        e(f"v_mov_b32 v{vf[0]+i}, v2")
    for i in range(32):
        e(f"v_mov_b32 v{vO[0]+i}, 0")
    for i in range(4, 8):
        e(f"v_mov_b32 v{vP+i}, 0")
    e("s_lshl_b32 s28, s11, 2")
    e(f"s_add_u32 s28, s28, {ATT_FLAG}")
    e("v_mov_b32 v113, s28")
    e("v_mov_b32 v114, 0")
    e("s_cmp_lg_u32 s34, 0")
    e(f"s_cbranch_scc1 {P}noinit")
    e("ds_write_b32 v113, v114")
    e.label(P+"noinit")
    e("v_mov_b32 v12, v14")
    e("s_lshl_b32 s26, s9, 15")
    e("s_lshl_b32 s28, s7, 10")
    e("s_add_u32 s26, s26, s28")
    e(f"s_add_u32 s26, s26, {WS_O:#x}")
    e("s_lshl_b32 s24, s34, 15")
    e("v_add_u32 v1, s24, v14")
    mark(e, 0)
    e("s_waitcnt vmcnt(0) lgkmcnt(0)")
    e("s_barrier")
    mark(e, 1)
    e(f"ds_read_b128 {vr(kf[0],4)}, v1")
    e("s_mov_b64 exec, s[22:23]")
    e(f"ds_read_b128 {vr(vf[0],4)}, v1 offset:1024")
    e(f"ds_read_b128 {vr(vf[0]+4,4)}, v1 offset:1280")
    e("s_mov_b64 exec, -1")
    dma(); dma(); dma()
    e("s_mov_b32 s21, 0")
    e("s_waitcnt lgkmcnt(2)")
    e(f"v_mfma_f32_32x32x16_bf16 {vr(vS[0],16)}, {vr(kf[0],4)}, {vr(vQ[0],4)}, 0")
    e("s_nop 7")
    e("s_nop 3")
    e.label(P+"loop")
    def unit(q, kS, vprevu1, vu0, wait0, wait1, kread, vread):
        Sc, Sn = vS[q], vS[1-q]
        X = lambda i: e(f"v_exp_f32 v{Sc+i}, v{Sc+i}")
        Cv = lambda p: e(f"v_cvt_pk_bf16_f32 v{vP+p}, v{Sc+2*p}, v{Sc+2*p+1}")
        if wait0 is not None: e(f"s_waitcnt lgkmcnt({wait0})")
        e(f"v_mfma_f32_32x32x16_bf16 {vr(Sn,16)}, {vr(kS,4)}, {vr(vQ[1-q],4)}, 0")
        X(0); X(1); X(2); X(3)
        e(f"v_mfma_f32_32x32x16_bf16 {vr(vO[1-q],16)}, {vr(vprevu1,4)}, {vr(vP+4,4)}, {vr(vO[1-q],16)}")
        Cv(0); X(4); X(5); Cv(1)
        if kread: e(kread)
        X(6); X(7); Cv(2); X(8); Cv(3); X(9)
        if wait1 is not None: e(f"s_waitcnt lgkmcnt({wait1})")
        else: e("s_nop 0")
        e(f"v_mfma_f32_32x32x16_bf16 {vr(vO[q],16)}, {vr(vu0,4)}, {vr(vP,4)}, {vr(vO[q],16)}")
        X(10); X(11); Cv(4)
        if vread:
            e("s_mov_b64 exec, s[22:23]")
            for t in vread: e(t)
            e("s_mov_b64 exec, -1")
        X(12); X(13); Cv(5); X(14); X(15); Cv(6); Cv(7)
    for jj in range(2):
        cur, nxt = jj, jj ^ 1
        base = jj * 2048
        unit(0, kf[cur], vf[nxt]+4, vf[cur], None, 2,
             f"ds_read_b128 {vr(kf[nxt],4)}, v1 offset:{base+2048}", None)
        unit(1, kf[nxt], vf[cur]+4, vf[cur], 0, None, None,
             [f"ds_read_b128 {vr(vf[nxt],4)}, v1 offset:{base+2048+1024}",
              f"ds_read_b128 {vr(vf[nxt]+4,4)}, v1 offset:{base+2048+1280}"])
    e("v_add_u32 v1, 4096, v1")
    e("s_add_u32 s21, s21, 1")
    e("s_cmp_eq_u32 s21, 1")
    e(f"s_cbranch_scc1 {P}early")
    e.label(P+"cont")
    e("s_cmp_lt_u32 s21, 8")
    e(f"s_cbranch_scc1 {P}loop")
    mark(e, 4)
    e(f"v_mfma_f32_32x32x16_bf16 {vr(vO[1],16)}, {vr(vf[1]+4,4)}, {vr(vP+4,4)}, {vr(vO[1],16)}")
    e("s_mul_i32 s28, s11, 4352")
    e(f"s_add_u32 s28, s28, {ATT_PART}")
    e("v_add_u32 v2, s28, v14")
    e("v_and_b32 v15, 31, v3")
    e("v_lshlrev_b32 v15, 2, v15")
    e("v_add_u32 v15, s28, v15")
    e("s_waitcnt lgkmcnt(0)")
    e("s_nop 7")
    e("s_nop 1")
    e("s_cmp_eq_u32 s34, 0")
    e(f"s_cbranch_scc1 {P}wr")
    e.label(P+"spin")
    e("ds_read_b32 v114, v113")
    e("s_waitcnt lgkmcnt(0)")
    e("v_readfirstlane_b32 s28, v114")
    e("s_cmp_eq_u32 s28, s34")
    e(f"s_cbranch_scc1 {P}got")
    e("s_sleep 2")
    e(f"s_branch {P}spin")
    e.label(P+"got")
    for q in range(2):
        e(f"ds_read_b128 {vr(vS[q],4)}, v2 offset:{q*2048}")
        e(f"ds_read_b128 {vr(vS[q]+4,4)}, v2 offset:{q*2048+1024}")
        e(f"ds_read_b32 v{vS[q]+8}, v15 offset:{4096+q*128}")
    e("s_waitcnt lgkmcnt(0)")
    for q in range(2):
        for i in range(9):
            e(f"v_add_f32 v{vO[q]+i}, v{vO[q]+i}, v{vS[q]+i}")
    e("s_cmp_eq_u32 s34, 3")
    e(f"s_cbranch_scc1 {P}last")
    e.label(P+"wr")
    for q in range(2):
        e(f"ds_write_b128 v2, {vr(vO[q],4)} offset:{q*2048}")
        e(f"ds_write_b128 v2, {vr(vO[q]+4,4)} offset:{q*2048+1024}")
        e(f"ds_write_b32 v15, v{vO[q]+8} offset:{4096+q*128}")
    e("s_add_u32 s28, s34, 1")
    e("v_mov_b32 v114, s28")
    e("s_waitcnt lgkmcnt(0)")
    e("ds_write_b32 v113, v114")
    e("s_waitcnt lgkmcnt(0)")
    endp(e)
    e.label(P+"last")
    e(f"v_mul_f32 v116, 0, v{vO[0]}")
    e(f"v_mul_f32 v117, 0, v{vO[1]}")
    for i in range(1, 8):
        e(f"v_fmac_f32 v116, 0, v{vO[0]+i}")
        e(f"v_fmac_f32 v117, 0, v{vO[1]+i}")
    e("v_add_f32 v116, v116, v117")
    e(f"s_mov_b32 s28, {f2u(2.0**-100):#x}")
    e(f"s_mov_b32 s29, {f2u(2.0**100):#x}")
    e(f"v_cmp_le_f32 s[30:31], s28, v{vO[0]+8}")
    e(f"v_cmp_ge_f32 s[32:33], s29, v{vO[0]+8}")
    e(f"v_cmp_le_f32 s[42:43], s28, v{vO[1]+8}")
    e(f"v_cmp_ge_f32 s[44:45], s29, v{vO[1]+8}")
    e("v_cmp_eq_f32 vcc, 0, v116")
    e("s_nop 1")
    e("s_and_b64 s[30:31], s[30:31], s[32:33]")
    e("s_and_b64 s[42:43], s[42:43], s[44:45]")
    e("s_and_b64 s[30:31], s[30:31], vcc")
    e("s_and_b64 s[30:31], s[30:31], s[42:43]")
    e("s_cmp_eq_u64 s[30:31], -1")
    e(f"s_cbranch_scc1 {P}fin")
    for q in range(2):
        L = f"{P}fb{q}"
        e("v_mov_b32 v1, v14")
        e("v_mov_b32 v2, 0xff800000")
        e("s_mov_b32 s21, 0")
        e.label(L+"a")
        e(f"ds_read_b128 {vr(kf[0],4)}, v1")
        e("s_waitcnt lgkmcnt(0)")
        e(f"v_mfma_f32_32x32x16_bf16 {vr(vS[0],16)}, {vr(kf[0],4)}, {vr(vQ[q],4)}, 0")
        e("v_add_u32 v1, 2048, v1")
        e("s_nop 7")
        e("s_nop 7")
        for i in range(0, 16, 2):
            e(f"v_max3_f32 v2, v2, v{vS[0]+i}, v{vS[0]+i+1}")
        e("s_add_u32 s21, s21, 1")
        e("s_cmp_lt_u32 s21, 64")
        e(f"s_cbranch_scc1 {L}a")
        e("v_mov_b32 v15, v2")
        e("s_nop 1")
        e("v_permlane32_swap_b32 v2, v15")
        e("s_nop 1")
        e("v_max_f32 v2, v2, v15")
        e("v_sub_f32 v2, 0, v2")
        for i in range(16):
            e(f"v_mov_b32 v{vC+i}, v2")
            e(f"v_mov_b32 v{vO[q]+i}, 0")
        e("v_mov_b32 v1, v14")
        e("s_mov_b32 s21, 0")
        e.label(L+"b")
        e(f"ds_read_b128 {vr(kf[0],4)}, v1")
        e("s_mov_b64 exec, s[22:23]")
        e(f"ds_read_b128 {vr(vf[0],4)}, v1 offset:1024")
        e(f"ds_read_b128 {vr(vf[0]+4,4)}, v1 offset:1280")
        e("s_mov_b64 exec, -1")
        e("s_waitcnt lgkmcnt(0)")
        e(f"v_mfma_f32_32x32x16_bf16 {vr(vS[0],16)}, {vr(kf[0],4)}, {vr(vQ[q],4)}, {vr(vC,16)}")
        e("v_add_u32 v1, 2048, v1")
        e("s_nop 7")
        e("s_nop 7")
        for i in range(16):
            e(f"v_exp_f32 v{vS[0]+i}, v{vS[0]+i}")
        e("s_nop 0")
        for p in range(8):
            e(f"v_cvt_pk_bf16_f32 v{vP+p}, v{vS[0]+2*p}, v{vS[0]+2*p+1}")
        e("s_nop 1")
        e(f"v_mfma_f32_32x32x16_bf16 {vr(vO[q],16)}, {vr(vf[0],4)}, {vr(vP,4)}, {vr(vO[q],16)}")
        e(f"v_mfma_f32_32x32x16_bf16 {vr(vO[q],16)}, {vr(vf[0]+4,4)}, {vr(vP+4,4)}, {vr(vO[q],16)}")
        e("s_add_u32 s21, s21, 1")
        e("s_cmp_lt_u32 s21, 64")
        e(f"s_cbranch_scc1 {L}b")
        e("s_nop 7")
        e("s_nop 7")
    e.label(P+"fin")
    for q in range(2):
        e(f"v_rcp_f32 v{116+q}, v{vO[q]+8}")
    e("s_nop 0")
    for q in range(2):
        for i in range(8):
            e(f"v_mul_f32 v{vO[q]+i}, v{vO[q]+i}, v{116+q}")
        for i in range(4):
            e(f"v_cvt_pk_bf16_f32 v{vS[q]+i}, v{vO[q]+2*i}, v{vO[q]+2*i+1}")
    e(f"buffer_store_dwordx4 {vr(vS[0],4)}, v12, s[12:15], s26 offen")
    e("s_add_u32 s26, s26, 32768")
    e(f"buffer_store_dwordx4 {vr(vS[1],4)}, v12, s[12:15], s26 offen")
    endp(e)
    e.label(P+"early")
    e("s_waitcnt vmcnt(0)")
    e("s_barrier")
    mark(e, 3)
    e("s_lshl_b32 s52, s8, 14")
    e("s_lshl_b32 s53, s6, 10")
    e("s_add_u32 s52, s52, s53")
    e(f"s_add_u32 s52, s52, {WS_WFO:#x}")
    e("buffer_load_dwordx4 v[120:123], v14, s[12:15], s52 offen")
    e("s_mov_b32 s47, 0x00020000")
    e("s_mul_i32 s52, s8, 57344")
    e("s_mul_i32 s53, s6, 3584")
    e("s_add_u32 s52, s52, s53")
    e("s_mov_b32 s44, s38"); e("s_mov_b32 s45, s39"); e(f"s_mov_b32 s46, {512*1792*2:#x}")
    for off in (0, 1024, 2048, 2560):
        e(f"buffer_load_dwordx4 v[120:123], v14, s[44:47], s52 offen offset:{off}")
    if ATT_PF_W2:
        e(f"s_add_u32 s52, s52, {WS_WF2:#x}")
        for off in (0, 1024, 2048, 2560):
            e(f"buffer_load_dwordx4 v[120:123], v14, s[12:15], s52 offen offset:{off}")
    e(f"s_branch {P}cont")
    e.label(P+"end")
    e("s_endpgm")
    return e.text() + desc(name, 128, 64), ATT_LDS

def loader_schedule(e, P, nch, S, per, burst0, nbar, need, free, issue, tail=None):
    ops = []
    issued = 0
    for _ in range(min(burst0, nch)):
        ops.append(('issue',)); issued += 1
    for b in range(nbar):
        nd = min(need(b), nch)
        assert issued >= nd, (b, issued, nd)
        ops.append(('bar', (issued - nd) * per))
        lim = min(nch, free(b))
        while issued < lim:
            ops.append(('issue',)); issued += 1
    assert issued == nch
    if INSTR and LOADER_TS and e.name in LOADER_TS:
        k = 0
        for op in ops:
            if op == ('issue',): issue()
            else:
                e(f"s_waitcnt vmcnt({op[1]})")
                if k < 10: e(f"s_memtime s[{56+4*k}:{57+4*k}]") if 56+4*k+3 <= 95 else None
                e("s_barrier")
                if k < 10: e(f"s_memtime s[{58+4*k}:{59+4*k}]") if 56+4*k+3 <= 95 else None
                k += 1
        e("s_waitcnt lgkmcnt(0)")
        e("s_load_dwordx2 s[48:49], s[0:1], 80")
        e("s_waitcnt lgkmcnt(0)")
        e("s_mov_b32 s52, s48"); e("s_mov_b32 s53, s49"); e(f"s_mov_b32 s54, {WS_SIZE:#x}"); e("s_mov_b32 s55, 0x00020000")
        e("v_lshrrev_b32 v16, 6, v0")
        e("s_lshl_b32 s50, s2, 4")
        e("v_add_u32 v16, s50, v16")
        e("v_lshlrev_b32 v16, 7, v16")
        e(f"v_add_u32 v16, {WS_TS + 0x200000 + KIDX[e.name]*0x80000:#x}, v16")
        for q in range(5):
            for t in range(4):
                idx = 4*q + t
                reg = 56 + 2*idx
                if reg <= 95:
                    e(f"s_sub_u32 s51, s{reg}, s97")
                    e(f"v_mov_b32 v{20+t}, s51")
            e(f"buffer_store_dwordx4 v[20:23], v16, s[52:55], 0 offen offset:{16*q}")
            e("s_nop 2")
        e("s_endpgm")
        return
    i = 0; lab = 0
    while i < len(ops):
        if ops[i] == ('issue',):
            n = 0
            while i + n < len(ops) and ops[i+n] == ('issue',): n += 1
            if n > 1:
                e(f"s_mov_b32 s47, {n}")
                e.label(f"{P}li{lab}")
                issue()
                e("s_sub_u32 s47, s47, 1")
                e("s_cmp_lg_u32 s47, 0")
                e(f"s_cbranch_scc1 {P}li{lab}")
                lab += 1
            else:
                issue()
            i += n
        else:
            n = 0
            while i + 2*n + 1 < len(ops) and ops[i+2*n] == ops[i] and ops[i+2*n+1] == ('issue',) and not (i+2*n+2 < len(ops) and ops[i+2*n+2] == ('issue',)): n += 1
            if n > 1:
                e(f"s_mov_b32 s47, {n}")
                e.label(f"{P}lb{lab}")
                e(f"s_waitcnt vmcnt({ops[i][1]})")
                e("s_barrier")
                issue()
                e("s_sub_u32 s47, s47, 1")
                e("s_cmp_lg_u32 s47, 0")
                e(f"s_cbranch_scc1 {P}lb{lab}")
                lab += 1
                i += 2*n
            else:
                e(f"s_waitcnt vmcnt({ops[i][1]})")
                e("s_barrier")
                i += 1
    if tail: tail()
    e("s_endpgm")

T1_S = 5
T1_SLOT = 32768
T1_LDS = T1_S * T1_SLOT

def t1_loader_addr(e, wstride):
    e("s_sub_u32 s7, s6, 4")
    e("v_and_b32 v3, 63, v0")
    e("v_lshrrev_b32 v4, 3, v3")
    e("s_lshl_b32 s8, s7, 3")
    e("v_add_u32 v4, s8, v4")
    e("v_lshlrev_b32 v4, 10, v4")
    e("v_lshrrev_b32 v5, 4, v3")
    e("s_and_b32 s8, s7, 1")
    e("s_lshl_b32 s8, s8, 2")
    e("v_add_u32 v6, s8, v5")
    e("v_and_b32 v7, 7, v3")
    e("v_xor_b32 v6, v6, v7")
    e("v_lshl_add_u32 v1, v6, 4, v4")
    e("s_lshl_b32 s8, s7, 2")
    e("v_add_u32 v4, s8, v5")
    e(f"v_mul_u32_u24 v4, {wstride}, v4")
    e("v_bfe_u32 v6, v3, 2, 2")
    e("v_xor_b32 v6, v6, v5")
    e("v_and_b32 v7, 3, v3")
    e("v_lshl_add_u32 v6, v6, 2, v7")
    e("v_lshl_add_u32 v2, v6, 4, v4")
    e("s_lshl_b32 s42, s7, 10")
    e("s_mov_b32 s43, 0")

def t1_loader(e, P, wstride, nch=8, tail=None):
    S = T1_S
    def issue():
        e("s_add_u32 s44, s42, s43")
        e("s_mov_b32 s45, s40")
        e("s_mov_b32 s46, s41")
        for i in range(4):
            e("s_mov_b32 m0, s44")
            e("s_add_u32 s44, s44, 4096")
            e("buffer_load_dwordx4 v1, s[12:15], s45 offen lds")
            e(f"s_add_u32 m0, s44, {16384-4096}")
            e(f"s_add_u32 s45, s45, 32768")
            e("buffer_load_dwordx4 v2, s[16:19], s46 offen lds")
            e(f"s_add_u32 s46, s46, {16*wstride}")
        e("s_add_u32 s40, s40, 128")
        e(f"s_add_u32 s41, s41, {64*wstride}")
        e(f"s_add_u32 s43, s43, {T1_SLOT}")
        e(f"s_cmp_eq_u32 s43, {S*T1_SLOT}")
        e("s_cselect_b32 s43, 0, s43")
    loader_schedule(e, P, nch, S, 8, 3, nch + 1,
                    need=lambda b: b + 1,
                    free=lambda b: (S + b - 1) if b >= 1 else 4,
                    issue=issue, tail=tail)

def t1_compute_addr(e, mode):
    e("s_lshr_b32 s7, s6, 1")
    e("s_and_b32 s8, s6, 1")
    e("v_and_b32 v3, 63, v0")
    e("v_and_b32 v4, 31, v3")
    e("v_lshrrev_b32 v5, 5, v3")
    e("v_bfe_u32 v6, v3, 1, 3")
    e("v_xor_b32 v6, v6, v5")
    e("v_lshlrev_b32 v6, 4, v6")
    e("s_lshl_b32 s9, s7, 6")
    e("s_lshl_b32 s10, s8, 5")
    e("s_add_u32 s9, s9, s10")
    e("v_add_u32 v7, s9, v4")
    e("v_lshlrev_b32 v7, 7, v7")
    for s in range(4):
        e(f"v_xor_b32 v{8+s}, {s<<5}, v6")
        e(f"v_add_u32 v{8+s}, v{8+s}, v7")
        e(f"v_xor_b32 v{12+s}, 4096, v{8+s}")
    e("v_lshrrev_b32 v6, 4, v3")
    e("v_bfe_u32 v7, v3, 2, 2")
    e("v_and_b32 v18, 3, v3")
    e("v_and_b32 v19, 1, v6")
    e("v_lshl_add_u32 v18, v19, 2, v18")
    if mode == 'generic':
        e("v_and_b32 v19, 1, v18")
        e("v_lshlrev_b32 v19, 2, v19")
        e("v_lshrrev_b32 v18, 1, v18")
        e("v_or_b32 v18, v18, v19")
    else:
        e("v_and_b32 v19, 1, v18")
        e("v_lshlrev_b32 v19, 1, v19")
        e("v_bfe_u32 v20, v18, 1, 1")
        e("v_and_b32 v18, 4, v18")
        e("v_or3_b32 v18, v18, v19, v20")
    e("v_lshrrev_b32 v6, 1, v6")
    e("v_lshl_add_u32 v6, v6, 3, v7")
    e("v_lshlrev_b32 v6, 8, v6")
    e("s_lshl_b32 s9, s8, 1")
    e("s_add_u32 s9, s9, s7")
    e("v_xor_b32 v7, s9, v7")
    e("v_lshlrev_b32 v7, 6, v7")
    e("v_add3_u32 v16, v6, v7, 0")
    e("v_lshl_add_u32 v16, v18, 3, v16")
    e("v_add_u32 v16, 16384, v16")
    e("v_xor_b32 v17, 64, v16")

FB = 32
ACC = 96
def fx(s, kp): return FB + 16*s + 4*kp
def fw(s, k): return FB + 16*s + 8 + 4*k
def t1_read_list(s):
    r = []
    r.append(f"ds_read_b128 {vr(fx(s,0),4)}, v{8+s}")
    r.append(f"ds_read_b64_tr_b16 {vr(fw(s,0),2)}, v16 offset:{s*4096}")
    r.append(f"ds_read_b64_tr_b16 {vr(fw(s,0)+2,2)}, v16 offset:{s*4096+1024}")
    r.append(f"ds_read_b128 {vr(fx(s,1),4)}, v{12+s}")
    r.append(f"ds_read_b64_tr_b16 {vr(fw(s,1),2)}, v17 offset:{s*4096}")
    r.append(f"ds_read_b64_tr_b16 {vr(fw(s,1)+2,2)}, v17 offset:{s*4096+1024}")
    return r

def t1_mainloop(e, P, vmode, colsum, after_init=None):
    S = T1_S
    mark(e, 0)
    e("s_barrier")
    mark(e, 1)
    for t in t1_read_list(0): e(t)
    for t in t1_read_list(1): e(t)
    if after_init: after_init()
    e("s_mov_b32 s20, 0")
    e("s_mov_b32 s21, 0")
    e.label(P+"kloop")
    e(f"s_add_u32 s22, s21, {T1_SLOT}")
    e(f"s_cmp_eq_u32 s22, {S*T1_SLOT}")
    e("s_cselect_b32 s22, 0, s22")
    e("s_sub_u32 s23, s22, s21")
    e("s_mov_b32 s21, s22")
    for s in range(4):
        ns = (s + 2) & 3
        e("s_waitcnt lgkmcnt(6)")
        if s == 2:
            e("s_barrier")
        rds = t1_read_list(ns)
        post = []
        if s == 0: post = [10, 14]
        if s == 1: post = [11, 15, 8, 12, 9, 13, 16, 17]
        post = [f"v_add_u32 v{a}, s23, v{a}" for a in post]
        mf = []
        for k in range(2):
            for kp in range(2):
                a = ACC + 16*(2*k + kp)
                if vmode:
                    mf.append(f"v_mfma_f32_32x32x16_bf16 {vr(a,16)}, {vr(fx(s,kp),4)}, {vr(fw(s,k),4)}, {vr(a,16)}")
                else:
                    mf.append(f"v_mfma_f32_32x32x16_bf16 {vr(a,16)}, {vr(fw(s,k),4)}, {vr(fx(s,kp),4)}, {vr(a,16)}")
        for g in range(4):
            e(mf[g])
            for t in rds[2*g:2*g+2]: e(t)
            if g == 3:
                for t in post: e(t)
        if colsum:
            e(f"v_mfma_f32_16x16x32_bf16 v[24:27], v[20:23], {vr(fw(s,0),4)}, v[24:27]")
    e("s_add_u32 s20, s20, 1")
    e("s_cmp_lt_u32 s20, 8")
    e(f"s_cbranch_scc1 {P}kloop")
    mark(e, 2)
    e("s_waitcnt lgkmcnt(0)")

def t1_init(e, colsum):
    for i in range(64): e(f"v_mov_b32 v{ACC+i}, 0")
    if colsum:
        for i in range(4): e(f"v_mov_b32 v{24+i}, 0")
        e("v_and_b32 v28, 15, v3")
        e("v_bfe_u32 v29, v3, 4, 1")
        e("v_cmp_eq_u32 vcc, v28, v29")
        e("v_mov_b32 v30, 0x3f803f80")
        e("s_nop 0")
        e("v_cndmask_b32 v20, 0, v30, vcc")
        for i in range(1, 4): e(f"v_mov_b32 v{20+i}, v20")

def t1_cs_write(e):
    e("s_barrier")
    e("v_lshrrev_b32 v29, 2, v4")
    e("v_and_b32 v30, 1, v29")
    e("v_lshlrev_b32 v30, 1, v30")
    e("v_bfe_u32 v31, v29, 1, 1")
    e("v_and_b32 v29, 4, v29")
    e("v_or3_b32 v29, v29, v30, v31")
    e("v_and_b32 v30, 3, v4")
    e("v_lshl_add_u32 v29, v29, 2, v30")
    e("v_add_u32 v30, s50, v29")
    e("v_lshlrev_b32 v30, 2, v30")
    e("v_lshl_add_u32 v30, v5, 12, v30")
    e("v_permlane16_swap_b32 v24, v25")
    e("s_nop 1")
    e("ds_write_b32 v30, v24 offset:1024")
    e("s_waitcnt lgkmcnt(0)")
    e("s_barrier")
    mark(e, 3)

def t1_stats_waves(e, P):
    S = T1_S
    e("s_sub_u32 s7, s6, 8")
    e("v_and_b32 v3, 63, v0")
    e("v_and_b32 v4, 31, v3")
    e("v_lshrrev_b32 v5, 5, v3")
    e("v_bfe_u32 v6, v3, 1, 3")
    e("v_xor_b32 v6, v6, v5")
    e("v_lshlrev_b32 v6, 4, v6")
    e("s_lshl_b32 s9, s7, 5")
    e("v_add_u32 v7, s9, v4")
    e("v_lshlrev_b32 v7, 7, v7")
    for s in range(4):
        e(f"v_xor_b32 v{8+s}, {s<<5}, v6")
        e(f"v_add_u32 v{8+s}, v{8+s}, v7")
    e("v_mov_b32 v21, 0xffff0000")
    for i in range(4): e(f"v_mov_b32 v{22+i}, 0")
    e("s_mov_b32 s20, 0")
    e("s_mov_b32 s21, 0")
    e.label(P+"st")
    e("s_barrier")
    for s in range(4):
        e(f"ds_read_b128 {vr(32+4*s,4)}, v{8+s}")
    e(f"s_add_u32 s22, s21, {T1_SLOT}")
    e(f"s_cmp_eq_u32 s22, {S*T1_SLOT}")
    e("s_cselect_b32 s22, 0, s22")
    e("s_sub_u32 s23, s22, s21")
    e("s_mov_b32 s21, s22")
    for s in range(4): e(f"v_add_u32 v{8+s}, s23, v{8+s}")
    for s in range(4):
        e(f"s_waitcnt lgkmcnt({3-s})")
        for i in range(4):
            r = 32 + 4*s + i
            t0, t1 = 26 + 2*(i & 1), 27 + 2*(i & 1)
            e(f"v_lshlrev_b32 v{t0}, 16, v{r}")
            e(f"v_and_b32 v{t1}, v21, v{r}")
            e(f"v_add_f32 v22, v22, v{t0}")
            e(f"v_add_f32 v23, v23, v{t1}")
            e(f"v_fmac_f32 v24, v{t0}, v{t0}")
            e(f"v_fmac_f32 v25, v{t1}, v{t1}")
    e("s_add_u32 s20, s20, 1")
    e("s_cmp_lt_u32 s20, 8")
    e(f"s_cbranch_scc1 {P}st")
    e("s_barrier")
    e("v_add_f32 v22, v22, v23")
    e("v_add_f32 v24, v24, v25")
    e("v_mov_b32 v23, v22")
    e("v_mov_b32 v25, v24")
    e("s_nop 1")
    e("v_permlane32_swap_b32 v22, v23")
    e("v_permlane32_swap_b32 v24, v25")
    e("s_nop 1")
    e("v_add_f32 v22, v22, v23")
    e("v_add_f32 v24, v24, v25")
    e(f"v_mul_f32 v22, {f2u(1.0/512):#x}, v22")
    e(f"v_mul_f32 v24, {f2u(1.0/512):#x}, v24")
    e("v_fma_f32 v24, -v22, v22, v24")
    e("v_max_f32 v24, 0, v24")
    e(f"v_add_f32 v24, {f2u(1e-5):#x}, v24")
    e("v_rsq_f32 v24, v24")
    e(f"s_mov_b32 s36, {f2u(0.25*1.4426950408889634):#x}")
    e("s_cmp_lt_u32 s31, 4")
    e("s_cselect_b32 s36, s36, 1.0")
    e("v_mul_f32 v24, s36, v24")
    e("v_mul_f32 v22, v22, v24")
    e("v_sub_f32 v22, 0, v22")
    e("v_add_u32 v28, s9, v4")
    e("v_lshlrev_b32 v28, 2, v28")
    e("s_barrier")
    e("ds_write_b32 v28, v24")
    e("ds_write_b32 v28, v22 offset:512")
    e("s_waitcnt lgkmcnt(0)")
    e("s_barrier")
    e("s_endpgm")

def tile_bases(e):
    for k in range(2):
        e(f"s_xor_b32 s9, s7, {k}")
        e("s_lshl_b32 s9, s9, 5")
        e("s_lshl_b32 s10, s8, 6")
        e(f"s_add_u32 s{50+k}, s9, s10")
    for kp in range(2):
        e(f"s_xor_b32 s9, s8, {kp}")
        e("s_lshl_b32 s9, s9, 5")
        e("s_lshl_b32 s10, s7, 6")
        e(f"s_add_u32 s{52+kp}, s9, s10")

def gen_colsum(e, P):
    e("v_cmp_gt_u32 vcc, 512, v0")
    e("s_and_saveexec_b64 s[8:9], vcc")
    e(f"s_cbranch_execz {P}csdone")
    e("s_load_dwordx2 s[44:45], s[0:1], 32")
    e("s_sub_u32 s3, s2, 192")
    e("v_and_b32 v1, 15, v0")
    e("v_lshrrev_b32 v2, 4, v0")
    e("v_mul_u32_u24 v3, 3584, v2")
    e("v_lshl_add_u32 v3, v1, 4, v3")
    e("s_lshl_b32 s4, s3, 8")
    e("s_waitcnt lgkmcnt(0)")
    srd(e, 12, 44, 45, 512*1792*2)
    srd(e, 32, 28, 29, WS_SIZE)
    for i in range(16):
        e(f"buffer_load_dwordx4 {vr(16+4*i,4)}, v3, s[12:15], s4 offen")
        e(f"s_add_u32 s4, s4, {32*3584}")
    for i in range(8): e(f"v_mov_b32 v{8+i}, 0")
    for i in range(16):
        e(f"s_waitcnt vmcnt({15-i})")
        for j in range(4):
            r = 16 + 4*i + j
            e(f"v_lshlrev_b32 v4, 16, v{r}")
            e(f"v_and_b32 v5, 0xffff0000, v{r}")
            e(f"v_add_f32 v{8+2*j}, v{8+2*j}, v4")
            e(f"v_add_f32 v{9+2*j}, v{9+2*j}, v5")
    e("v_lshlrev_b32 v4, 9, v2")
    e("v_lshl_add_u32 v4, v1, 5, v4")
    e("ds_write_b128 v4, v[8:11]")
    e("ds_write_b128 v4, v[12:15] offset:16")
    e("s_waitcnt lgkmcnt(0)")
    e("s_barrier")
    e("v_cmp_gt_u32 vcc, 128, v0")
    e("s_and_saveexec_b64 s[8:9], vcc")
    e(f"s_cbranch_execz {P}csdone")
    e("v_lshlrev_b32 v4, 2, v0")
    for i in range(32):
        e(f"ds_read_b32 v{16+i}, v4 offset:{512*i}")
        if i == 14: e("s_waitcnt lgkmcnt(0)")
        if i == 29: e("s_waitcnt lgkmcnt(0)")
    e("s_waitcnt lgkmcnt(0)")
    for i in range(1, 32):
        e(f"v_add_f32 v16, v16, v{16+i}")
    e("s_lshl_b32 s4, s3, 9")
    e(f"s_add_u32 s4, s4, {WS_CS1:#x}")
    e("buffer_store_dword v16, v4, s[32:35], s4 offen")
    e.label(P+"csdone")
    e("s_endpgm")


def gen_relayout(e, P):
    e("v_cmp_gt_u32 vcc, 256, v0")
    e("s_and_saveexec_b64 s[8:9], vcc")
    e(f"s_cbranch_execz {P}rldone")
    e("s_load_dwordx2 s[44:45], s[0:1], 16")
    e("s_load_dwordx2 s[46:47], s[0:1], 48")
    e("v_lshrrev_b32 v2, 6, v0")
    e("v_and_b32 v3, 63, v0")
    e("v_readfirstlane_b32 s6, v2")
    e("v_lshrrev_b32 v5, 4, v3")
    e("s_lshl_b32 s8, s6, 2")
    e("v_add_u32 v4, s8, v5")
    e("v_lshlrev_b32 v4, 10, v4")
    e("v_bfe_u32 v6, v3, 2, 2")
    e("v_xor_b32 v6, v6, v5")
    e("v_and_b32 v7, 3, v3")
    e("v_lshl_add_u32 v6, v6, 2, v7")
    e("v_lshl_add_u32 v1, v6, 4, v4")
    e("v_lshrrev_b32 v6, 4, v3")
    e("v_bfe_u32 v7, v3, 2, 2")
    e("v_and_b32 v18, 3, v3")
    e("v_and_b32 v19, 1, v6")
    e("v_lshl_add_u32 v18, v19, 2, v18")
    e("v_and_b32 v19, 1, v18")
    e("v_lshlrev_b32 v19, 1, v19")
    e("v_bfe_u32 v20, v18, 1, 1")
    e("v_and_b32 v18, 4, v18")
    e("v_or3_b32 v18, v18, v19, v20")
    e("v_lshrrev_b32 v6, 1, v6")
    e("v_lshl_add_u32 v6, v6, 3, v7")
    e("v_lshlrev_b32 v6, 8, v6")
    e("v_xor_b32 v7, s6, v7")
    e("v_lshlrev_b32 v7, 6, v7")
    e("v_add3_u32 v16, v6, v7, 0")
    e("v_lshl_add_u32 v16, v18, 3, v16")
    e("v_lshlrev_b32 v17, 4, v3")
    e("s_sub_u32 s3, s2, 206")
    e("s_mul_i32 s3, s3, 3")
    e("s_waitcnt lgkmcnt(0)")
    srd(e, 32, 28, 29, WS_SIZE)
    for i in range(3):
        e(f"s_add_u32 s4, s3, {i}")
        e("s_cmp_lt_u32 s4, 32")
        e("s_cselect_b32 s12, s44, s46")
        e("s_cselect_b32 s13, s45, s47")
        e(f"s_cselect_b32 s14, {512*512*2:#x}, s14") if False else None
        e(f"s_mov_b32 s14, {1792*512*2:#x}")
        e(f"s_cselect_b32 s14, {512*1024:#x}, s14")
        e("s_mov_b32 s15, 0x00020000")
        e("s_cselect_b32 s5, 0, 32")
        e("s_sub_u32 s5, s4, s5")
        e("s_lshr_b32 s7, s5, 2")
        e("s_and_b32 s5, s5, 3")
        e("s_lshl_b32 s7, s7, 16")
        e("s_lshl_b32 s5, s5, 8")
        e("s_add_u32 s7, s7, s5")
        e("s_lshl_b32 s9, s6, 10")
        e(f"s_add_u32 s9, s9, {i*16384}")
        for q in range(4):
            e("s_mov_b32 m0, s9")
            e("s_add_u32 s9, s9, 4096")
            e("buffer_load_dwordx4 v1, s[12:15], s7 offen lds")
            e("s_add_u32 s7, s7, 16384")
    for i in range(3):
        e(f"s_waitcnt vmcnt({0 if i == 2 else 0})") if i == 0 else None
        if i == 0: e("s_barrier")
        for sx in range(4):
            e(f"ds_read_b64_tr_b16 {vr(32+4*sx,2)}, v16 offset:{i*16384 + sx*4096}")
            e(f"ds_read_b64_tr_b16 {vr(34+4*sx,2)}, v16 offset:{i*16384 + sx*4096 + 1024}")
        e(f"s_add_u32 s4, s3, {i}")
        e("s_cmp_lt_u32 s4, 32")
        e("s_cselect_b32 s5, 0, 32")
        e("s_cselect_b32 s10, 32, 112")
        e(f"s_mov_b32 s11, {WS_WF2:#x}")
        e(f"s_cselect_b32 s11, {WS_WFO:#x}, s11")
        e("s_sub_u32 s5, s4, s5")
        e("s_lshr_b32 s7, s5, 2")
        e("s_and_b32 s5, s5, 3")
        e("s_lshl_b32 s5, s5, 2")
        e("s_add_u32 s5, s5, s6")
        e("s_mul_i32 s5, s5, s10")
        e("s_lshl_b32 s7, s7, 2")
        e("s_add_u32 s5, s5, s7")
        e("s_lshl_b32 s5, s5, 10")
        e("s_add_u32 s5, s5, s11")
        e("s_waitcnt lgkmcnt(0)")
        for sx in range(4):
            e(f"buffer_store_dwordx4 {vr(32+4*sx,4)}, v17, s[32:35], s5 offen offset:{sx*1024}")
        e("s_nop 1")
        if i < 2: e("s_waitcnt vmcnt(0)") if False else None
    e.label(P+"rldone")
    e("s_endpgm")

def gen_qkv(name):
    e = E(); P = "q_"
    header(e, name)
    e("s_cmp_ge_u32 s2, 254")
    e(f"s_cbranch_scc1 {P}end")
    e("s_load_dwordx4 s[24:27], s[0:1], 0")
    e("s_load_dwordx2 s[28:29], s[0:1], 80")
    e("s_cmp_ge_u32 s2, 206")
    e(f"s_cbranch_scc1 {P}rl")
    e("s_cmp_ge_u32 s2, 192")
    e(f"s_cbranch_scc1 {P}cs")
    e("v_lshrrev_b32 v2, 6, v0")
    e("s_and_b32 s3, s2, 7")
    e("s_lshr_b32 s4, s2, 3")
    e("v_readfirstlane_b32 s6, v2")
    e("s_and_b32 s5, s3, 3")
    e("s_lshl_b32 s5, s5, 2")
    e("s_and_b32 s9, s4, 3")
    e("s_add_u32 s30, s5, s9")
    e("s_lshr_b32 s5, s3, 2")
    e("s_mul_i32 s5, s5, 6")
    e("s_lshr_b32 s9, s4, 2")
    e("s_add_u32 s31, s5, s9")
    e("s_cmp_ge_u32 s6, 4")
    e(f"s_cbranch_scc0 {P}comp")
    e("s_cmp_ge_u32 s6, 8")
    e(f"s_cbranch_scc1 {P}stw")
    t1_loader_addr(e, 3072)
    e("s_lshl_b32 s40, s30, 17")
    e("s_lshl_b32 s41, s31, 8")
    e("s_waitcnt lgkmcnt(0)")
    srd(e, 12, 24, 25, 2048*512*2)
    srd(e, 16, 26, 27, 512*1536*2)
    t1_loader(e, P, 3072)
    e.label(P+"stw")
    t1_stats_waves(e, P)
    e.label(P+"rl")
    gen_relayout(e, P)
    e.label(P+"cs")
    gen_colsum(e, P)
    e.label(P+"comp")
    t1_compute_addr(e, 'qk')
    t1_init(e, True)
    tile_bases(e)
    e("s_waitcnt lgkmcnt(0)")
    srd(e, 32, 28, 29, WS_SIZE)
    e("s_cmp_ge_u32 s31, 8")
    e(f"s_cbranch_scc1 {P}vpath")
    t1_mainloop(e, P+"a", False, True)
    t1_cs_write(e)
    for kp in range(2):
        e(f"v_add_u32 v28, s{52+kp}, v4")
        e("v_lshlrev_b32 v28, 2, v28")
        e(f"ds_read2st64_b32 {vr(8+2*kp,2)}, v28 offset0:0 offset1:2")
    for k in range(2):
        e(f"v_lshl_add_u32 v28, v5, 3, s{50+k}")
        e("v_lshlrev_b32 v28, 2, v28")
        for q, off in enumerate((0, 16, 64, 80)):
            e(f"ds_read_b128 {vr(32+16*k+4*q,4)}, v28 offset:{1024+off}")
    e("s_and_b32 s9, s31, 3")
    e("s_lshl_b32 s9, s9, 19")
    e("s_cmp_lt_u32 s31, 4")
    e(f"s_cselect_b32 s10, {WS_Q:#x}, {WS_K:#x}")
    e("s_add_u32 s37, s9, s10")
    e("s_lshl_b32 s9, s30, 12")
    e("s_add_u32 s37, s37, s9")
    e("v_lshlrev_b32 v1, 4, v3")
    e("s_waitcnt lgkmcnt(0)")
    for k in range(2):
        for kp in range(2):
            a = ACC + 16*(2*k+kp)
            st = 8 + 2*kp
            for p in range(8):
                tmp = 64 + 2*p
                e(f"v_pk_mul_f32 {vr(tmp,2)}, {vr(32+16*k+2*p,2)}, {vr(st,2)} op_sel:[0,1] op_sel_hi:[1,1]")
            for p in range(8):
                tmp = 64 + 2*p
                e(f"v_pk_fma_f32 {vr(a+2*p,2)}, {vr(a+2*p,2)}, {vr(st,2)}, {vr(tmp,2)} op_sel_hi:[1,0,1]")
            for p in range(8):
                e(f"v_cvt_pk_bf16_f32 v{a+p}, v{a+2*p}, v{a+2*p+1}")
            e(f"s_lshl_b32 s9, s{50+k}, 12")
            e(f"s_lshl_b32 s10, s{52+kp}, 5")
            e("s_add_u32 s9, s9, s10")
            e("s_add_u32 s9, s9, s37")
            e("s_add_u32 s10, s9, 65536")
            e(f"buffer_store_dwordx4 {vr(a,4)}, v1, s[32:35], s9 offen")
            e(f"buffer_store_dwordx4 {vr(a+4,4)}, v1, s[32:35], s10 offen")
    endp(e)
    e.label(P+"vpath")
    t1_mainloop(e, P+"b", True, True)
    t1_cs_write(e)
    for k in range(2):
        e(f"v_add_u32 v28, s{50+k}, v29")
        e("v_lshlrev_b32 v28, 2, v28")
        e(f"ds_read_b32 v{8+2*k}, v28 offset:1024")
    for kp in range(2):
        e(f"v_lshl_add_u32 v28, v5, 2, s{52+kp}")
        e("v_lshlrev_b32 v28, 2, v28")
        for g in range(4):
            e(f"ds_read_b128 {vr(32+32*kp+4*g,4)}, v28 offset:{32*g}")
            e(f"ds_read_b128 {vr(48+32*kp+4*g,4)}, v28 offset:{512+32*g}")
        e("s_waitcnt lgkmcnt(0)")
    e("v_lshrrev_b32 v1, 4, v4")
    e("v_lshlrev_b32 v1, 16, v1")
    e("v_lshl_add_u32 v1, v5, 9, v1")
    e("v_and_b32 v2, 15, v4")
    e("v_lshl_add_u32 v1, v2, 4, v1")
    e("s_and_b32 s9, s31, 3")
    e("s_lshl_b32 s9, s9, 19")
    e(f"s_add_u32 s37, s9, {WS_V:#x}")
    e("s_lshl_b32 s9, s30, 12")
    e("s_add_u32 s37, s37, s9")
    for k in range(2):
        for kp in range(2):
            a = ACC + 16*(2*k+kp)
            for p in range(8):
                tmp = 12 + 2*p
                e(f"v_pk_mul_f32 {vr(tmp,2)}, {vr(48+32*kp+2*p,2)}, {vr(8+2*k,2)} op_sel_hi:[1,0]")
            for p in range(8):
                tmp = 12 + 2*p
                e(f"v_pk_fma_f32 {vr(a+2*p,2)}, {vr(a+2*p,2)}, {vr(32+32*kp+2*p,2)}, {vr(tmp,2)}")
            for p in range(8):
                e(f"v_cvt_pk_bf16_f32 v{a+p}, v{a+2*p}, v{a+2*p+1}")
            e(f"s_lshl_b32 s9, s{50+k}, 12")
            e(f"s_lshl_b32 s10, s{52+kp}, 5")
            e("s_add_u32 s9, s9, s10")
            e("s_add_u32 s9, s9, s37")
            e(f"buffer_store_dwordx4 {vr(a,4)}, v1, s[32:35], s9 offen")
            e(f"buffer_store_dwordx4 {vr(a+4,4)}, v1, s[32:35], s9 offen offset:256")
    endp(e)
    e.label(P+"end")
    e("s_endpgm")
    return e.text() + desc(name, 160, 64), T1_LDS

F1_PF_AT = 6
def gen_ffn1(name):
    e = E(); P = "f1_"
    S = 8; SLOT = 16384
    AUX = S*SLOT
    header(e, name)
    e("s_cmp_ge_u32 s2, 224")
    e(f"s_cbranch_scc1 {P}end")
    e("s_load_dwordx4 s[24:27], s[0:1], 32")
    e("s_load_dwordx2 s[28:29], s[0:1], 80")
    e("v_lshrrev_b32 v2, 6, v0")
    e("s_and_b32 s3, s2, 7")
    e("s_lshr_b32 s4, s2, 3")
    e("v_readfirstlane_b32 s6, v2")
    e("s_lshl_b32 s5, s3, 1")
    e("s_and_b32 s9, s4, 1")
    e("s_add_u32 s30, s5, s9")
    e("s_lshr_b32 s31, s4, 1")
    e("v_and_b32 v3, 63, v0")
    e("s_cmp_ge_u32 s6, 4")
    e(f"s_cbranch_scc0 {P}comp")
    e("s_sub_u32 s7, s6, 4")
    e("v_lshrrev_b32 v5, 4, v3")
    e("s_lshl_b32 s8, s7, 2")
    e("v_add_u32 v4, s8, v5")
    e("v_mul_u32_u24 v4, 3584, v4")
    e("v_bfe_u32 v6, v3, 2, 2")
    e("v_xor_b32 v6, v6, v5")
    e("v_and_b32 v7, 3, v3")
    e("v_lshl_add_u32 v6, v6, 2, v7")
    e("v_lshl_add_u32 v2, v6, 4, v4")
    e("v_lshlrev_b32 v1, 4, v3")
    e("s_lshl_b32 s44, s7, 10")
    e("s_lshl_b32 s41, s31, 8")
    e("s_waitcnt lgkmcnt(0)")
    srd(e, 16, 24, 25, 512*1792*2)
    def issue():
        for i in range(4):
            e("s_mov_b32 m0, s44")
            e("s_add_u32 s44, s44, 4096")
            e("buffer_load_dwordx4 v2, s[16:19], s41 offen lds")
            e(f"s_add_u32 s41, s41, {16*3584}")
    issue()
    srd(e, 12, 28, 29, WS_SIZE)
    srd(e, 20, 26, 27, 1792*2)
    issue()
    e("s_waitcnt vmcnt(4)")
    e("s_barrier")
    issue()
    e("s_lshl_b32 s9, s30, 10")
    e("s_lshl_b32 s10, s7, 16")
    e("s_add_u32 s9, s9, s10")
    e(f"s_add_u32 s9, s9, {WS_PART:#x}")
    e("s_lshl_b32 s10, s7, 12")
    e(f"s_add_u32 s10, s10, {AUX}")
    for i in range(4):
        e("s_mov_b32 m0, s10")
        e("s_add_u32 s10, s10, 1024")
        e("buffer_load_dwordx4 v1, s[12:15], s9 offen lds")
        e("s_add_u32 s9, s9, 16384")
    e("s_lshl_b32 s9, s31, 9")
    e(f"s_add_u32 s9, s9, {WS_CS1:#x}")
    e("s_lshl_b32 s10, s31, 8")
    e("s_cmp_eq_u32 s7, 1")
    e(f"s_cbranch_scc1 {P}ldb")
    e("s_cmp_eq_u32 s7, 0")
    e(f"s_mov_b32 s11, {AUX+18432}")
    e(f"s_cselect_b32 s11, {AUX+16384}, s11")
    e("s_mov_b32 m0, s11")
    e("s_nop 0")
    e("buffer_load_dwordx4 v1, s[12:15], s9 offen lds")
    e(f"s_branch {P}ldc")
    e.label(P+"ldb")
    e(f"s_mov_b32 m0, {AUX+17408}")
    e("s_nop 0")
    e("buffer_load_dwordx4 v1, s[20:23], s10 offen lds")
    e.label(P+"ldc")
    e("s_waitcnt vmcnt(9)")
    e("s_barrier")
    issue()
    e("s_waitcnt vmcnt(9)")
    e("s_barrier")
    issue()
    e("s_waitcnt vmcnt(4)")
    e("s_barrier")
    for b in range(4, 9):
        if b + 1 <= 7: issue()
        e(f"s_waitcnt vmcnt({4 if b + 1 <= 7 else 0})")
        e("s_barrier")
        if F1_PF_AT is not None and b == F1_PF_AT:
            pass
    if F1_PF_AT is not None:
        e("s_lshl_b32 s50, s4, 16")
        e("s_lshl_b32 s51, s7, 14")
        e("s_add_u32 s50, s50, s51")
        e(f"s_add_u32 s50, s50, {WS_WF2:#x}")
        for i in range(16):
            e(f"buffer_load_dwordx4 v[8:11], v1, s[12:15], s50 offen offset:{(i&3)*1024}")
            if (i & 3) == 3: e("s_add_u32 s50, s50, 4096")
    e("s_endpgm")
    e.label(P+"comp")
    XB = 32
    WB = 160
    AC = 176
    XAHEAD = 10
    e("v_and_b32 v4, 31, v3")
    e("v_lshrrev_b32 v5, 5, v3")
    e("v_lshlrev_b32 v1, 4, v3")
    e("s_lshl_b32 s9, s30, 2")
    e("s_add_u32 s9, s9, s6")
    e("s_mov_b32 s33, s9")
    e("s_lshl_b32 s34, s9, 15")
    e(f"s_add_u32 s34, s34, {WS_H:#x}")
    e("s_waitcnt lgkmcnt(0)")
    srd(e, 12, 28, 29, WS_SIZE)
    def xload(ks):
        if ks and (ks & 3) == 0: e("s_add_u32 s34, s34, 4096")
        e(f"buffer_load_dwordx4 {vr(XB+4*ks,4)}, v1, s[12:15], s34 offen offset:{(ks & 3)*1024}")
    for ks in range(XAHEAD): xload(ks)
    e("v_lshrrev_b32 v6, 4, v3")
    e("v_bfe_u32 v7, v3, 2, 2")
    e("v_and_b32 v18, 3, v3")
    e("v_and_b32 v19, 1, v6")
    e("v_lshl_add_u32 v18, v19, 2, v18")
    e("v_and_b32 v19, 1, v18")
    e("v_lshlrev_b32 v19, 1, v19")
    e("v_bfe_u32 v20, v18, 1, 1")
    e("v_and_b32 v18, 4, v18")
    e("v_or3_b32 v18, v18, v19, v20")
    e("v_lshrrev_b32 v6, 1, v6")
    e("v_lshl_add_u32 v6, v6, 3, v7")
    e("v_lshlrev_b32 v6, 8, v6")
    e("v_lshl_add_u32 v6, v18, 3, v6")
    for a in range(4):
        e(f"v_xor_b32 v19, {a}, v7")
        e(f"v_lshl_add_u32 v{8+a}, v19, 6, v6")
    for i in range(64): e(f"v_mov_b32 v{AC+i}, 0")
    e("s_lshl_b32 s9, s6, 5")
    e("v_add_u32 v14, s9, v4")
    e("v_lshlrev_b32 v14, 3, v14")
    e("v_lshl_add_u32 v14, v5, 13, v14")
    e(f"v_add_u32 v14, {AUX}, v14")
    e("v_lshlrev_b32 v15, 5, v5")
    e(f"v_add_u32 v15, {AUX+16384}, v15")
    e("v_lshlrev_b32 v16, 4, v5")
    e(f"v_add_u32 v16, {AUX+17408}, v16")
    e("v_mov_b32 v17, 0xffff0000")
    def rd(a, s_):
        return [f"ds_read_b64_tr_b16 {vr(WB+4*a,2)}, v{8+a} offset:{s_*4096}",
                f"ds_read_b64_tr_b16 {vr(WB+4*a+2,2)}, v{8+a} offset:{s_*4096+1024}"]
    mark(e, 0)
    e("s_barrier")
    mark(e, 1)
    for a in range(4):
        for t in rd(a, 0): e(t)
    side = {}
    for c in range(8):
        for s_ in range(4):
            ks = 4*c + s_
            ns = (s_ + 1) & 3
            if s_ == 3:
                e("s_barrier")
                for a in range(4): e(f"v_add_u32 v{8+a}, {SLOT if c < 7 else 0}, v{8+a}") if c < 7 else None
            issued = min(32, XAHEAD + ks)
            e(f"s_waitcnt vmcnt({issued - ks - 1})")
            extra_lds = []
            if ks == 18:
                extra_lds = [f"ds_read_b64 {vr(32+2*q,2)}, v14 offset:{q*1024}" for q in range(8)]
            for a in range(4):
                e("s_waitcnt lgkmcnt(6)")
                e(f"v_mfma_f32_32x32x16_bf16 {vr(AC+16*a,16)}, {vr(WB+4*a,4)}, {vr(XB+4*ks,4)}, {vr(AC+16*a,16)}")
                for t in rd(a, ns): e(t)
                if a == 0 and XAHEAD + ks < 32: xload(XAHEAD + ks)
    mark(e, 2)
    e("s_waitcnt lgkmcnt(0)")
    for q in range(8):
        e(f"ds_read_b64 {vr(32+2*q,2)}, v14 offset:{q*1024}")
    for a in range(2):
        e(f"ds_read_b128 {vr(128+8*a,4)}, v16 offset:{a*64}")
        e(f"ds_read_b128 {vr(128+8*a+4,4)}, v16 offset:{a*64+32}")
    e("s_waitcnt lgkmcnt(4)")
    for a in range(2, 4):
        e(f"ds_read_b128 {vr(128+8*a,4)}, v16 offset:{a*64}")
        e(f"ds_read_b128 {vr(128+8*a+4,4)}, v16 offset:{a*64+32}")
    for q, off in enumerate((0, 16, 64, 80)):
        e(f"ds_read_b128 {vr(64+4*q,4)}, v15 offset:{off}")
    for q in range(1, 8):
        e(f"v_pk_add_f32 v[32:33], v[32:33], {vr(32+2*q,2)}")
    e("v_mov_b32 v34, v32")
    e("v_mov_b32 v35, v33")
    e("s_nop 1")
    e("v_permlane32_swap_b32 v32, v34")
    e("v_permlane32_swap_b32 v33, v35")
    e("s_nop 1")
    e("v_add_f32 v32, v32, v34")
    e("v_add_f32 v33, v33, v35")
    e(f"v_mul_f32 v32, {f2u(1.0/512):#x}, v32")
    e(f"v_mul_f32 v33, {f2u(1.0/512):#x}, v33")
    e("v_fma_f32 v33, -v32, v32, v33")
    e("v_max_f32 v33, 0, v33")
    e(f"v_add_f32 v33, {f2u(1e-5):#x}, v33")
    e("v_rsq_f32 v24, v33")
    e("s_waitcnt lgkmcnt(4)")
    for a in range(1, 3):
        for q, off in enumerate((0, 16, 64, 80)):
            e(f"ds_read_b128 {vr(64+16*a+4*q,4)}, v15 offset:{a*128+off}")
    e("v_mul_f32 v25, v32, v24")
    e("v_sub_f32 v25, 0, v25")
    GA = -2.0*0.7978845608028654*1.4426950408889634
    GB = GA*0.044715
    e(f"v_mov_b32 v12, {f2u(GA):#x}")
    e(f"v_mov_b32 v13, {f2u(GB):#x}")
    e("s_mul_i32 s49, s33, 112")
    e("s_lshl_b32 s9, s31, 3")
    e("s_add_u32 s49, s49, s9")
    e("s_lshl_b32 s49, s49, 10")
    e(f"s_add_u32 s49, s49, {WS_F:#x}")
    mark(e, 3)
    for a in range(4):
        acc = AC + 16*a
        if a == 0: e("s_waitcnt lgkmcnt(8)")
        if a == 1:
            e("s_waitcnt lgkmcnt(4)")
        if a == 2: e("s_waitcnt lgkmcnt(4)")
        if a == 3: e("s_waitcnt lgkmcnt(0)")
        T = [(p, 32+2*p, 48+2*p) for p in range(8)]
        for p, ta, tb in T:
            e(f"v_lshlrev_b32 v{tb}, 16, v{128+8*a+p}")
            e(f"v_and_b32 v{tb+1}, v17, v{128+8*a+p}")
        for p, ta, tb in T:
            e(f"v_pk_fma_f32 {vr(ta,2)}, {vr(64+16*a+2*p,2)}, v[24:25], {vr(tb,2)} op_sel:[0,1,0] op_sel_hi:[1,1,1]")
        if a == 1:
            for q, off in enumerate((0, 16, 64, 80)):
                e(f"ds_read_b128 {vr(64+48+4*q,4)}, v15 offset:{3*128+off}")
        for p, ta, tb in T:
            e(f"v_pk_fma_f32 {vr(acc+2*p,2)}, {vr(acc+2*p,2)}, v[24:25], {vr(ta,2)} op_sel_hi:[1,0,1]")
        for p, ta, tb in T:
            e(f"v_pk_mul_f32 {vr(ta,2)}, {vr(acc+2*p,2)}, {vr(acc+2*p,2)}")
        for p, ta, tb in T:
            e(f"v_pk_fma_f32 {vr(ta,2)}, {vr(ta,2)}, v[12:13], v[12:13] op_sel:[0,1,0] op_sel_hi:[1,1,0]")
        for p, ta, tb in T:
            e(f"v_pk_mul_f32 {vr(ta,2)}, {vr(ta,2)}, {vr(acc+2*p,2)}")
        for p, ta, tb in T:
            e(f"v_exp_f32 v{ta}, v{ta}")
            e(f"v_exp_f32 v{ta+1}, v{ta+1}")
        for p, ta, tb in T:
            e(f"v_pk_add_f32 {vr(ta,2)}, {vr(ta,2)}, 1.0 op_sel_hi:[1,0]")
        for p, ta, tb in T:
            e(f"v_rcp_f32 v{ta}, v{ta}")
            e(f"v_rcp_f32 v{ta+1}, v{ta+1}")
        for p, ta, tb in T:
            e(f"v_pk_mul_f32 {vr(acc+2*p,2)}, {vr(acc+2*p,2)}, {vr(ta,2)}")
        for p in range(8):
            e(f"v_cvt_pk_bf16_f32 v{acc+p}, v{acc+2*p}, v{acc+2*p+1}")
        e(f"buffer_store_dwordx4 {vr(acc,4)}, v1, s[12:15], s49 offen offset:{(2*a & 3)*1024}")
        e(f"buffer_store_dwordx4 {vr(acc+4,4)}, v1, s[12:15], s49 offen offset:{((2*a+1) & 3)*1024}")
        if a == 1: e("s_add_u32 s49, s49, 4096")
    endp(e)
    e.label(P+"end")
    e("s_endpgm")
    return e.text() + desc(name, 240, 64), AUX + 19456

def gen_t2(name, P, kind):
    e = E()
    header(e, name)
    e("s_cmp_ge_u32 s2, 256")
    e(f"s_cbranch_scc1 {P}end")
    if kind == 'wo':
        e("s_load_dwordx2 s[26:27], s[0:1], 0")
        e("s_load_dwordx2 s[28:29], s[0:1], 80")
        nks, XS, WF = 32, WS_O, WS_WFO
    else:
        e("s_load_dwordx2 s[26:27], s[0:1], 56")
        e("s_load_dwordx2 s[28:29], s[0:1], 80")
        e("s_load_dwordx2 s[30:31], s[0:1], 64")
        nks, XS, WF = 112, WS_F, WS_WF2
    kper = nks // 4
    e("v_lshrrev_b32 v2, 6, v0")
    e("v_and_b32 v3, 63, v0")
    e("s_and_b32 s3, s2, 7")
    e("s_lshr_b32 s4, s2, 3")
    e("v_readfirstlane_b32 s6, v2")
    e("s_lshl_b32 s5, s3, 2")
    e("s_and_b32 s9, s4, 3")
    e("s_add_u32 s48, s5, s9")
    e("s_lshr_b32 s49, s4, 2")
    e("v_lshlrev_b32 v1, 4, v3")
    e("s_lshr_b32 s7, s6, 1")
    e("s_and_b32 s8, s6, 1")
    e("s_lshl_b32 s9, s48, 1")
    e("s_add_u32 s50, s9, s7")
    e("s_xor_b32 s10, s50, 1")
    e(f"s_mul_i32 s11, s6, {kper}")
    e(f"s_mul_i32 s40, s50, {nks}")
    e("s_add_u32 s40, s40, s11")
    e("s_lshl_b32 s40, s40, 10")
    e(f"s_add_u32 s40, s40, {XS:#x}")
    e(f"s_mul_i32 s41, s10, {nks}")
    e("s_add_u32 s41, s41, s11")
    e("s_lshl_b32 s41, s41, 10")
    e(f"s_add_u32 s41, s41, {XS:#x}")
    e("s_lshl_b32 s9, s49, 1")
    e("s_add_u32 s9, s9, s8")
    e("s_xor_b32 s10, s9, 1")
    e(f"s_mul_i32 s42, s9, {nks}")
    e("s_add_u32 s42, s42, s11")
    e("s_lshl_b32 s42, s42, 10")
    e(f"s_add_u32 s42, s42, {WF:#x}")
    e(f"s_mul_i32 s43, s10, {nks}")
    e("s_add_u32 s43, s43, s11")
    e("s_lshl_b32 s43, s43, 10")
    e(f"s_add_u32 s43, s43, {WF:#x}")
    e("s_lshl_b32 s51, s9, 1")
    e("s_waitcnt lgkmcnt(0)")
    srd(e, 12, 28, 29, WS_SIZE)
    D = 8 if kind == 'wo' else 7
    FB_ = 64
    AC = 192
    def loads(slot, off):
        b = FB_ + 16*slot
        e(f"buffer_load_dwordx4 {vr(b,4)}, v1, s[12:15], s40 offen offset:{off}")
        e(f"buffer_load_dwordx4 {vr(b+8,4)}, v1, s[12:15], s42 offen offset:{off}")
        e(f"buffer_load_dwordx4 {vr(b+4,4)}, v1, s[12:15], s41 offen offset:{off}")
        e(f"buffer_load_dwordx4 {vr(b+12,4)}, v1, s[12:15], s43 offen offset:{off}")
    def adv(n):
        for r in (40, 41, 42, 43): e(f"s_add_u32 s{r}, s{r}, {n}")
    def mm(slot, first=False):
        b = FB_ + 16*slot
        for a in range(2):
            for bb in range(2):
                acc = AC + 16*(2*a + bb)
                c = "0" if first else vr(acc,16)
                e(f"v_mfma_f32_32x32x16_bf16 {vr(acc,16)}, {vr(b+8+4*a,4)}, {vr(b+4*bb,4)}, {c}")
    def aux():
        e("v_and_b32 v4, 31, v3")
        e("v_lshrrev_b32 v5, 5, v3")
        e("v_lshlrev_b32 v6, 10, v4")
        e("v_lshl_add_u32 v6, v5, 4, v6")
        e("s_lshl_b32 s52, s50, 15")
        e("s_lshl_b32 s9, s51, 5")
        e("s_add_u32 s52, s52, s9")
        e("s_lshl_b32 s53, s50, 5")
        e("s_add_u32 s53, s53, s51")
        e("s_lshl_b32 s53, s53, 10")
        e(f"s_add_u32 s53, s53, {WS_H:#x}")
        if kind == 'wo':
            srd(e, 32, 26, 27, 2048*512*2)
            e("buffer_load_dwordx4 v[32:35], v6, s[32:35], s52 offen")
            e("buffer_load_dwordx4 v[36:39], v6, s[32:35], s52 offen offset:32")
            return 2
        srd(e, 32, 26, 27, 512*2)
        srd(e, 36, 30, 31, 2048*512*2)
        e("buffer_load_dwordx4 v[32:35], v1, s[12:15], s53 offen")
        e("buffer_load_dwordx4 v[36:39], v1, s[12:15], s53 offen offset:1024")
        e("v_lshlrev_b32 v7, 4, v5")
        e("s_lshl_b32 s9, s51, 5")
        e("buffer_load_dwordx4 v[40:43], v7, s[32:35], s9 offen")
        e("buffer_load_dwordx4 v[44:47], v7, s[32:35], s9 offen offset:32")
        return 4
    if kind == 'wo':
        for i in range(4): loads(i, i*1024)
        adv(4096)
        mark(e, 0)
        for i in range(8):
            if i < 4: loads(4+i, i*1024)
            if i == 4: naux = aux()
            issued = 4*min(8, 5+i) + (2 if i >= 4 else 0)
            e(f"s_waitcnt vmcnt({issued - 4*(i+1)})")
            if i == 0: mark(e, 1)
            mm(i, first=(i == 0))
    else:
        for i in range(7):
            loads(i, (i & 3)*1024)
            if i == 3: adv(4096)
        adv(3*1024)
        mark(e, 0)
        for i in range(7):
            e("s_waitcnt vmcnt(24)")
            if i == 0: mark(e, 1)
            mm(i, first=(i == 0))
            loads(i, (i & 3)*1024)
            if i == 3: adv(4096)
        adv(3072)
        e("s_mov_b32 s20, 0")
        e.label(P+"kloop")
        for i in range(7):
            e("s_waitcnt vmcnt(24)")
            mm(i)
            loads(i, (i & 3)*1024)
            if i == 3: adv(4096)
        adv(3072)
        e("s_add_u32 s20, s20, 1")
        e("s_cmp_lt_u32 s20, 2")
        e(f"s_cbranch_scc1 {P}kloop")
        naux = aux()
        for i in range(7):
            e(f"s_waitcnt vmcnt({4*(6-i) + 4})")
            mm(i)
    mark(e, 2)
    e("s_nop 7")
    for jq in (1, 2, 3):
        a, bb = jq & 1, jq >> 1
        acc = AC + 16*(2*a + bb)
        e(f"s_xor_b32 s9, s6, {jq}")
        e("s_mul_i32 s9, s9, 3")
        e(f"s_add_u32 s9, s9, {jq-1}")
        e("s_lshl_b32 s9, s9, 12")
        e(f"v_add_u32 v{8+jq}, s9, v1")
    for jq in (1, 2, 3):
        a, bb = jq & 1, jq >> 1
        acc = AC + 16*(2*a + bb)
        for q in range(4):
            e(f"ds_write_b128 v{8+jq}, {vr(acc+4*q,4)} offset:{q*1024}")
    e("s_mul_i32 s9, s6, 12288")
    e("v_add_u32 v8, s9, v1")
    e("s_waitcnt vmcnt(0)")
    for i in range(8):
        e(f"v_lshlrev_b32 v{112+2*i}, 16, v{32+i}")
        e(f"v_and_b32 v{113+2*i}, 0xffff0000, v{32+i}")
    if kind != 'wo':
        for i in range(8):
            e(f"v_lshlrev_b32 v{128+2*i}, 16, v{40+i}")
            e(f"v_and_b32 v{129+2*i}, 0xffff0000, v{40+i}")
        for i in range(8):
            e(f"v_pk_add_f32 {vr(112+2*i,2)}, {vr(112+2*i,2)}, {vr(128+2*i,2)}")
    for i in range(8):
        e(f"v_pk_add_f32 {vr(AC+2*i,2)}, {vr(AC+2*i,2)}, {vr(112+2*i,2)}")
    e("s_waitcnt lgkmcnt(0)")
    e("s_barrier")
    mark(e, 3)
    for idx in range(3):
        for q in range(4):
            e(f"ds_read_b128 {vr(64+16*idx+4*q,4)}, v8 offset:{idx*4096+q*1024}")
    for idx in range(3):
        e(f"s_waitcnt lgkmcnt({8-4*idx})")
        for i in range(8):
            e(f"v_pk_add_f32 {vr(AC+2*i,2)}, {vr(AC+2*i,2)}, {vr(64+16*idx+2*i,2)}")
    for p in range(8):
        e(f"v_cvt_pk_bf16_f32 v{144+p}, v{AC+2*p}, v{AC+2*p+1}")
    if kind == 'wo':
        e("buffer_store_dwordx4 v[144:147], v1, s[12:15], s53 offen")
        e("buffer_store_dwordx4 v[148:151], v1, s[12:15], s53 offen offset:1024")
        e("v_mov_b32 v20, 0")
        e("v_mov_b32 v21, 0")
        e("v_mov_b32 v22, 0")
        e("v_mov_b32 v23, 0")
        for p in range(8):
            e(f"v_lshlrev_b32 v{24+2*(p&1)}, 16, v{144+p}")
            e(f"v_and_b32 v{25+2*(p&1)}, 0xffff0000, v{144+p}")
            e(f"v_add_f32 v20, v20, v{24+2*(p&1)}")
            e(f"v_add_f32 v22, v22, v{25+2*(p&1)}")
            e(f"v_fmac_f32 v21, v{24+2*(p&1)}, v{24+2*(p&1)}")
            e(f"v_fmac_f32 v23, v{25+2*(p&1)}, v{25+2*(p&1)}")
        e("v_add_f32 v20, v20, v22")
        e("v_add_f32 v21, v21, v23")
        e("v_mov_b32 v22, v20")
        e("v_mov_b32 v23, v21")
        e("s_nop 1")
        e("v_permlane32_swap_b32 v20, v22")
        e("v_permlane32_swap_b32 v21, v23")
        e("s_nop 1")
        e("v_add_f32 v20, v20, v22")
        e("v_add_f32 v21, v21, v23")
        e("v_lshlrev_b32 v2, 3, v4")
        e("s_lshl_b32 s9, s50, 8")
        e("s_lshl_b32 s10, s51, 13")
        e("s_add_u32 s9, s9, s10")
        e(f"s_add_u32 s9, s9, {WS_PART:#x}")
        e("buffer_store_dwordx2 v[20:21], v2, s[12:15], s9 offen")
    else:
        e("buffer_store_dwordx4 v[144:147], v6, s[36:39], s52 offen")
        e("buffer_store_dwordx4 v[148:151], v6, s[36:39], s52 offen offset:32")
    endp(e)
    e.label(P+"end")
    e("s_endpgm")
    return e.text() + desc(name, 256, 64), 49152

HEADER = """; Kernarg layout for this problem (88 bytes, ptrs only, base s[0:1]):
;   offset  16: d_in[2] A_wo  shape=(512, 512) dtype=bfloat16 strides=(1024, 2) contiguous=True
;   offset  80: d_ws      268435456 bytes workspace
"""

def build(kernels=None):
    ks = [
        ("qkv_kernel", gen_qkv, 254, 768),
        ("attn_kernel", gen_attn, 256, 1024),
        ("wo_kernel", lambda n: gen_t2(n, "wo_", 'wo'), 256, 256),
        ("ffn1_kernel", gen_ffn1, 224, 512),
        ("ffn2_kernel", lambda n: gen_t2(n, "f2_", 'ffn2'), 256, 256),
    ]
    head = HEADER
    body = ""
    for name, fn, grid, blk in ks:
        t, lds = fn(name)
        head += f"; @launch kernel={name} grid=({grid},1,1) block=({blk},1,1) lds={lds}\n"
        body += t
    return head + '.amdgcn_target "amdgcn-amd-amdhsa--gfx950"\n.text\n' + body

if __name__ == "__main__":
    if "--dbgts" in sys.argv:
        DBGTS = True
        sys.argv.remove("--dbgts")
    for a in list(sys.argv):
        if a.startswith("--sf="):
            STORE_FLAGS = a[5:].replace("+", " ")
            sys.argv.remove(a)
    if "--instr" in sys.argv:
        INSTR = True
        sys.argv.remove("--instr")
    out = sys.argv[1] if len(sys.argv) > 1 else f"cdna_kernels/{NAME}.s"
    t = build()
    open(out, "w").write(t)
    from lint import lint
    r = lint(t)
    for x in r: print(x)
    print(len(r), "hazards;", len(t), "bytes")
```
